```python
import torch

def _softmax(x, axis=-1):
    return torch.softmax(x, dim=axis)

def _gelu(x):
    return torch.nn.functional.gelu(x, approximate='tanh')

def _silu(x):
    return torch.nn.functional.silu(x)

def _sigmoid(x):
    return torch.sigmoid(x)

def _layernorm(x, axis=-1, eps=1e-05):
    m = x.mean(dim=axis, keepdim=True)
    v = x.var(dim=axis, keepdim=True, unbiased=False)
    return (x - m) / torch.sqrt(v + eps)

def _scatter_add(tgt, idx, src, axis=0):
    return tgt.clone().index_add_(axis, idx, src)

def _segment_sum(src, seg, n):
    out = torch.zeros((n,) + src.shape[1:], dtype=src.dtype)
    return out.index_add_(0, seg, src)

def _pad(x, pw):
    flat = tuple((v for pair in reversed(pw) for v in pair))
    return torch.nn.functional.pad(x, flat)
kernel_name = 'sequential_preLN__memory_aug_recurrent_mem_tr__dense_activation_relu__prompt'

def setup_inputs():

    _w = lambda a: (lambda t: t.to(torch.bfloat16) if t.is_floating_point() else t)(torch.as_tensor(a))

    def _A_setup():
        B, S, Dm = (1, 2048, 576)
        H, Dh = (32, 128)
        M, seg = (8, 32)
        seg = min(seg, S)
        S = S // seg * seg
        return {'x': _w((lambda *s: torch.randn(*s, dtype=torch.bfloat16) * 0.05)(B, S, Dm)), 'mem0': _w((lambda *s: torch.randn(*s, dtype=torch.bfloat16) * 0.2)(B, M, Dm)), 'Wq': _w((lambda *s: torch.randn(*s, dtype=torch.bfloat16) * 1.6)(Dm, H, Dh) * Dm ** (-0.5)), 'Wk': _w((lambda *s: torch.randn(*s, dtype=torch.bfloat16) * 1.6)(Dm, H, Dh) * Dm ** (-0.5)), 'Wv': _w((lambda *s: torch.randn(*s, dtype=torch.bfloat16) * 0.2)(Dm, H, Dh) * Dm ** (-0.5)), 'Wo': _w((lambda *s: torch.randn(*s, dtype=torch.bfloat16) * 0.2)(H, Dh, Dm) * (H * Dh) ** (-0.5)), 'seg_len': seg}
    _A_in = _A_setup()

    def _B_setup():
        B, S, D, Dff = (1, 2048, 576, 4608)
        return {'x': _w((lambda *s: torch.randn(*s, dtype=torch.bfloat16) * 0.05)(B, S, D)), 'w1': _w((lambda *s: torch.randn(*s, dtype=torch.bfloat16) * 0.05)(D, Dff)), 'w2': _w((lambda *s: torch.randn(*s, dtype=torch.bfloat16) * 0.05)(Dff, D))}
    _B_in = _B_setup()
    return {'A_x': _A_in['x'], 'A_mem0': _A_in['mem0'], 'A_Wq': _A_in['Wq'], 'A_Wk': _A_in['Wk'], 'A_Wv': _A_in['Wv'], 'A_Wo': _A_in['Wo'], 'A_seg_len': _A_in['seg_len'], 'B_x': _B_in['x'], 'B_w1': _B_in['w1'], 'B_w2': _B_in['w2']}

def reference(A_x, A_mem0, A_Wq, A_Wk, A_Wv, A_Wo, A_seg_len, B_x, B_w1, B_w2):

    def _A_ref(x, mem0, Wq, Wk, Wv, Wo, seg_len):
        B, S, Dm = x.shape
        H, Dh = (Wq.shape[1], Wq.shape[2])
        M = mem0.shape[1]
        scale = Dh ** (-0.5)
        n_seg = S // seg_len
        L = M + seg_len
        idx = torch.arange(L)
        mask = (idx[:, None] < M) | (idx[:, None] >= idx[None, :])
        mem = mem0
        outs = []
        for s in range(n_seg):
            xs = x[:, s * seg_len:(s + 1) * seg_len, :].clone()
            h = torch.concatenate([mem, xs], axis=1)
            q = torch.einsum('btd,dhe->bhte', h, Wq)
            k = torch.einsum('btd,dhe->bhte', h, Wk)
            v = torch.einsum('btd,dhe->bhte', h, Wv)
            scores = torch.einsum('bhqe,bhke->bhqk', q, k) * scale
            scores = torch.where(mask[None, None], scores, -1000000000.0)
            p = _softmax(scores, axis=-1)
            o = torch.einsum('bhqk,bhke->bhqe', p, v)
            o = torch.einsum('bhte,hed->btd', o, Wo)
            mem = o[:, :M, :].clone()
            outs.append(o[:, M:, :])
        return torch.concatenate(outs, axis=1)

    def _B_ref(x, w1, w2):
        h = torch.einsum('bsd,df->bsf', x, w1)
        zero = torch.zeros_like(h)
        h = torch.maximum(h, zero)
        return torch.einsum('bsf,fd->bsd', h, w2)
    x = A_x
    h = x + _A_ref(_layernorm(x, axis=-1), A_mem0, A_Wq, A_Wk, A_Wv, A_Wo, A_seg_len)
    h2 = h + _B_ref(_layernorm(h, axis=-1), B_w1, B_w2)
    return h2
```

```python
import re
class Asm:
    def __init__(self):
        self.lines = []
        self.uid = 0
    def __call__(self, s):
        for l in s.split("\n"):
            l = l.strip()
            if l:
                if l.startswith("buffer_"):
                    m = re.search(r"offset:(\d+)", l)
                    assert not m or int(m.group(1)) <= 4095, l
                if l.startswith("ds_"):
                    for m in re.finditer(r"offset:(\d+)", l): assert int(m.group(1)) <= 65535, l
                self.lines.append(("" if l.endswith(":") else "    ") + l)
    def raw(self, s):
        self.lines.append(s)
    def label(self, base="L"):
        self.uid += 1
        return f"{base}_{self.uid}"
    def text(self):
        return "\n".join(self.lines) + "\n"

def kernel_header(name):
    return f""".globl {name}
.p2align 8
.type {name},@function
{name}:
"""

def kernel_desc(name, vgpr=512, accum=256, sgpr=102, kernarg=104):
    return f""".section .rodata,"a"
.p2align 6
.amdhsa_kernel {name}
  .amdhsa_next_free_vgpr {vgpr}
  .amdhsa_next_free_sgpr {sgpr}
  .amdhsa_accum_offset {accum}
  .amdhsa_group_segment_fixed_size 0
  .amdhsa_kernarg_size {kernarg}
  .amdhsa_user_sgpr_count 2
  .amdhsa_user_sgpr_kernarg_segment_ptr 1
  .amdhsa_system_sgpr_workgroup_id_x 1
.end_amdhsa_kernel
"""

def vr(a, n=1):
    return f"v{a}" if n == 1 else f"v[{a}:{a+n-1}]"
def ar(a, n=1):
    return f"a{a}" if n == 1 else f"a[{a}:{a+n-1}]"
def sr(a, n=1):
    return f"s{a}" if n == 1 else f"s[{a}:{a+n-1}]"
```

```python
INB_SLOT = 36*32*256
WS_INBOX = 0
WS_MEMG  = 0xD8000
MEM_SLOT = 9216
WS_FLAGS = 0xE0000
FL_STRIDE = 64
FL_XN, FL_Q, FL_KV, FL_M, FL_PA, FL_H, FL_PB = range(7)
def flag_off(stage, seg=0): return WS_FLAGS + (stage*64 + seg)*FL_STRIDE
FLAGS_BYTES = 8*64*FL_STRIDE
WS_REP   = 0xF0000
WS_XN    = 0x100000
WS_XP    = 0x380000
WS_QF    = 0x600000
WS_KF    = 0x1600000
WS_VF    = 0x2600000
WS_KM    = 0x3600000
WS_VM    = 0x3E00000
WS_PA    = 0x4600000
WS_H     = 0x8E00000
WS_HN    = 0x9100000
WS_PB    = 0x9400000
WS_SIZE  = 0x10000000
SEGB     = 36864
KA_X, KA_MEM0, KA_WQ, KA_WK, KA_WV, KA_WO, KA_SEG, KA_BX, KA_W1, KA_W2, KA_OUT, KA_DBG, KA_WS = [8*i for i in range(13)]
DB_XCC = 0
DB_WORKER = 8
DB_TEAMBAR = 9
DB_IMPURE = 10
DB_INIT = 11
```

```python
from asmlib import *
from layout import *
import struct

S_WS = 8; S_TMP = 12; S_DBG = 16
S_W = 20; S_IDX = 21; S_SEG = 22; S_SPIN = 23
S_A = 24
S_IO = 40
S_B = 44
WSR = f"s[{S_WS}:{S_WS+3}]"
TMPR = f"s[{S_TMP}:{S_TMP+3}]"
IOR = f"s[{S_IO}:{S_IO+3}]"
def v4(b): return f"v[{b}:{b+3}]"
def v2(b): return f"v[{b}:{b+1}]"
def f2h(x): return struct.unpack("<I", struct.pack("<f", x))[0]
CAP = 3000000

def make_srd(a, dst, ka_off, nbytes):
    a(f"""s_load_dwordx2 s[{S_A}:{S_A+1}], s[0:1], {ka_off}
    s_waitcnt lgkmcnt(0)
    s_mov_b32 s{dst}, s{S_A}
    s_mov_b32 s{dst+1}, s{S_A+1}
    s_mov_b32 s{dst+2}, {nbytes}
    s_mov_b32 s{dst+3}, 0x20000""")

def wait_flag(a, s_off, target, L_fail, vt=250, sleep=2):
    lp = a.label("Lwf"); ok = a.label("Lwf")
    a(f"""s_mov_b64 exec, 1
    v_mov_b32 v{vt}, 0
    {lp}:
    buffer_load_dword v{vt+1}, v{vt}, {WSR}, s{s_off} offen sc1
    s_waitcnt vmcnt(0)
    v_readfirstlane_b32 s{S_A+14}, v{vt+1}
    s_cmp_ge_u32 s{S_A+14}, {target}
    s_cbranch_scc1 {ok}
    s_add_u32 s{S_SPIN}, s{S_SPIN}, 1
    s_cmp_gt_u32 s{S_SPIN}, {CAP}
    s_cbranch_scc1 {L_fail}
    s_sleep {sleep}
    s_branch {lp}
    {ok}:
    s_mov_b64 exec, -1""")

def signal(a, s_off, vt=250):
    a(f"""s_mov_b64 exec, 1
    v_mov_b32 v{vt}, 0
    v_mov_b32 v{vt+1}, 1
    buffer_atomic_add v{vt+1}, v{vt}, {WSR}, s{s_off} offen sc1
    s_mov_b64 exec, -1""")

def flag_sgpr(a, dst, stage, s_seg):
    a(f"s_lshl_b32 s{dst}, s{s_seg}, 6")
    a(f"s_add_u32 s{dst}, s{dst}, {flag_off(stage)}")

def wait_init(a, L_fail):
    lp = a.label("Lwi"); ok = a.label("Lwi")
    a(f"""s_mov_b64 exec, 1
    v_mov_b32 v250, {DB_INIT*4}
    {lp}:
    buffer_load_dword v251, v250, s[{S_DBG}:{S_DBG+3}], 0 offen sc1
    s_waitcnt vmcnt(0)
    v_readfirstlane_b32 s{S_A+14}, v251
    s_cmp_lg_u32 s{S_A+14}, 0
    s_cbranch_scc1 {ok}
    s_add_u32 s{S_SPIN}, s{S_SPIN}, 1
    s_cmp_gt_u32 s{S_SPIN}, {CAP}
    s_cbranch_scc1 {L_fail}
    s_sleep 1
    s_branch {lp}
    {ok}:
    s_mov_b64 exec, -1""")

def round_bf16(a, dst, src, tmp):
    a(f"v_cvt_pk_bf16_f32 v{tmp}, v{src}, v{src}")
    a(f"v_lshlrev_b32 v{dst}, 16, v{tmp}")

def reduce8(a, r, t):
    for mod in ("quad_perm:[1,0,3,2]", "quad_perm:[2,3,0,1]", "row_half_mirror"):
        a("s_nop 1")
        a(f"v_add_f32_dpp v{r}, v{r}, v{r} {mod} row_mask:0xf bank_mask:0xf")

def role_ln(a, L_fail, first, stride):
    make_srd(a, S_IO, KA_X, 2048*1152)
    lp = a.label("Lln"); done = a.label("Lln")
    a(f"""
    v_and_b32 v1, 63, v0
    v_lshrrev_b32 v2, 3, v1            ; l>>3
    v_and_b32 v3, 7, v1                ; part
    s_lshl_b32 s{S_A}, s{S_W}, 3
    v_add_u32 v4, s{S_A}, v2           ; token
    v_mul_u32_u24 v5, 1152, v4
    v_lshlrev_b32 v6, 4, v3
    v_add_u32 v5, v5, v6
    v_lshrrev_b32 v6, 1, v3
    v_lshlrev_b32 v7, 10, v6
    v_and_b32 v8, 1, v3
    v_lshlrev_b32 v9, 9, v8
    v_lshlrev_b32 v10, 4, v4
    v_add3_u32 v7, v7, v9, v10
    v_lshrrev_b32 v9, 2, v4
    v_mul_u32_u24 v9, 4608, v9
    v_and_b32 v10, 3, v4
    v_lshlrev_b32 v10, 4, v10
    v_lshlrev_b32 v11, 7, v6
    v_lshlrev_b32 v12, 3, v8
    v_add3_u32 v9, v9, v10, v11
    v_add_u32 v9, v9, v12
    s_mov_b32 s{S_SEG}, s{S_IDX}
    {lp}:
    s_cmp_ge_u32 s{S_SEG}, 64
    s_cbranch_scc1 {done}
    s_mul_i32 s{S_A}, s{S_SEG}, {SEGB}
    """)
    X = 32; F = 80
    for i in range(9):
        a(f"buffer_load_dwordx4 {v4(X+4*i)}, v5, {IOR}, s{S_A} offen offset:{i*128} nt")
    a(f"s_add_u32 s{S_A+1}, s{S_A}, {WS_XP}")
    a(f"s_add_u32 s{S_A+2}, s{S_A+1}, 4096")
    a("s_waitcnt vmcnt(0)")
    for i in range(9):
        so = S_A+1 if i < 8 else S_A+2
        off = (i % 8)*512
        a(f"buffer_store_dwordx2 {v2(X+4*i)}, v9, {WSR}, s{so} offen offset:{off} sc1")
        a(f"buffer_store_dwordx2 {v2(X+4*i+2)}, v9, {WSR}, s{so} offen offset:{off+64} sc1")
    for k in range(36):
        a(f"v_lshlrev_b32 v{F+2*k}, 16, v{X+k}")
        a(f"v_and_b32 v{F+2*k+1}, 0xffff0000, v{X+k}")
    a(f"v_pk_add_f32 v[14:15], {v2(F)}, {v2(F+2)}")
    for k in range(2, 36):
        a(f"v_pk_add_f32 v[14:15], v[14:15], {v2(F+2*k)}")
    a("v_add_f32 v14, v14, v15")
    reduce8(a, 14, 15)
    a(f"v_mul_f32 v14, {f2h(1.0/576):#x}, v14")
    a("v_mov_b32 v16, 0\nv_mov_b32 v17, 0")
    for k in range(36):
        a(f"v_pk_add_f32 v[18:19], {v2(F+2*k)}, v[14:15] op_sel_hi:[1,0] neg_lo:[0,1] neg_hi:[0,1]")
        a(f"v_pk_fma_f32 v[16:17], v[18:19], v[18:19], v[16:17]")
    a("v_add_f32 v16, v16, v17")
    reduce8(a, 16, 17)
    a(f"v_mul_f32 v16, {f2h(1.0/576):#x}, v16")
    round_bf16(a, 16, 16, 17)
    a(f"v_add_f32 v16, {f2h(1e-5):#x}, v16")
    round_bf16(a, 16, 16, 17)
    a("v_sqrt_f32 v16, v16\ns_nop 0")
    round_bf16(a, 16, 16, 17)
    a("v_rcp_f32 v16, v16")
    round_bf16(a, 14, 14, 17)
    for k in range(36):
        a(f"v_pk_add_f32 v[18:19], {v2(F+2*k)}, v[14:15] op_sel_hi:[1,0] neg_lo:[0,1] neg_hi:[0,1]")
        a(f"v_cvt_pk_bf16_f32 v20, v18, v19")
        a(f"v_lshlrev_b32 v18, 16, v20")
        a(f"v_and_b32 v19, 0xffff0000, v20")
        a(f"v_pk_mul_f32 v[18:19], v[18:19], v[16:17] op_sel_hi:[1,0]")
        a(f"v_cvt_pk_bf16_f32 v{X+k}, v18, v19")
    a(f"s_add_u32 s{S_A+1}, s{S_A}, {WS_XN}")
    for i in range(9):
        a(f"buffer_store_dwordx4 {v4(X+4*i)}, v7, {WSR}, s{S_A+1} offen sc1")
        a(f"s_add_u32 s{S_A+1}, s{S_A+1}, 4096")
    a("s_waitcnt vmcnt(0)")
    a("s_barrier")
    sk = a.label("Lln")
    a(f"s_cmp_lg_u32 s{S_W}, 0\ns_cbranch_scc1 {sk}")
    flag_sgpr(a, S_A+3, FL_XN, S_SEG)
    signal(a, S_A+3)
    a(f"""{sk}:
    s_add_u32 s{S_SEG}, s{S_SEG}, {stride}
    s_branch {lp}
    {done}:
    s_waitcnt vmcnt(0)
    """)

def load_wT_frags(a, srd, row_stride, col_byte_sgpr, nrows, dst0, swz_rows=True, kmap="nat", lds0=0, ncolgran=16):
    nfr = nrows // 16
    ninstr = nrows // 4
    per_wave = ninstr // 4
    lp = a.label("Lwd")
    a(f"""
    v_and_b32 v1, 63, v0
    v_lshrrev_b32 v2, 4, v1            ; row in group (0..3)
    v_and_b32 v3, 15, v1               ; pos
    v_lshlrev_b32 v4, 2, v2
    v_xor_b32 v3, v3, v4               ; source granule = pos ^ (row<<2)
    v_lshlrev_b32 v3, 4, v3
    v_mul_u32_u24 v4, {row_stride}, v2
    v_add_u32 v3, v3, v4               ; per-lane source offset
    s_mul_i32 s{S_A+4}, s{S_W}, {per_wave}        ; first instr index
    s_lshl_b32 s{S_A+5}, s{S_A+4}, 10
    s_add_u32 s{S_A+5}, s{S_A+5}, {lds0}          ; LDS dst
    s_mul_i32 s{S_A+6}, s{S_A+4}, {4*row_stride}
    s_add_u32 s{S_A+6}, s{S_A+6}, s{col_byte_sgpr}
    s_mov_b32 s{S_A+7}, 0
    {lp}:
    s_mov_b32 m0, s{S_A+5}
    s_add_u32 s{S_A+5}, s{S_A+5}, 1024
    buffer_load_dwordx4 v3, {srd}, s{S_A+6} offen nt lds
    s_add_u32 s{S_A+6}, s{S_A+6}, {4*row_stride}
    s_add_u32 s{S_A+7}, s{S_A+7}, 1
    s_cmp_lt_u32 s{S_A+7}, {per_wave}
    s_cbranch_scc1 {lp}
    ; tr-read address: lane (gi=l>>4, r'=(l>>2)&3, c'=l&3): kg=gi>>1 ; col granule q = 4w + 2(gi&1) + (c'>>1)
    v_lshrrev_b32 v4, 4, v1            ; gi
    v_lshrrev_b32 v5, 2, v1
    v_and_b32 v5, 3, v5                ; r'
    v_and_b32 v6, 3, v1                ; c'
    v_lshrrev_b32 v7, 1, v4            ; kg
    v_and_b32 v8, 1, v4                ; gi&1
    v_lshlrev_b32 v8, 1, v8
    v_lshrrev_b32 v9, 1, v6
    s_lshl_b32 s{S_A+4}, s{S_W}, 2
    v_add3_u32 v8, v8, v9, s{S_A+4}    ; q
    v_lshlrev_b32 v9, 2, v5            ; f(d) = (d&3)<<2 = r'<<2  (row offsets below keep d&3 = r')
    v_xor_b32 v8, v8, v9
    v_lshlrev_b32 v8, 4, v8
    v_and_b32 v9, 1, v6
    v_lshlrev_b32 v9, 3, v9
    v_add_u32 v8, v8, v9               ; col part
    v_lshlrev_b32 v9, {3 if kmap=='nat' else 2}, v7     ; kg*8 (nat) or kg*4 (pc)
    v_add_u32 v9, v9, v5               ; + r'
    v_lshlrev_b32 v9, 8, v9
    v_add3_u32 v10, v8, v9, {0}
    v_add_u32 v10, {lds0}, v10
    s_waitcnt vmcnt(0)
    s_barrier
    """.replace("v_add3_u32 v10, v8, v9, 0", "v_add_u32 v10, v8, v9"))
    second = 4*256 if kmap == 'nat' else 8*256
    for t in range(nfr):
        off = (t % 8)*4096
        if t and t % 8 == 0: a("v_add_u32 v10, 32768, v10")
        a(f"ds_read_b64_tr_b16 {v2(dst0+4*t)}, v10 offset:{off}")
        a(f"ds_read_b64_tr_b16 {v2(dst0+4*t+2)}, v10 offset:{off+second}")
        if t % 4 == 3: a("s_waitcnt lgkmcnt(4)")
    a("s_waitcnt lgkmcnt(0)")
    a("s_barrier")

def dma_seg(a, s_goff, lds_base_sgpr):
    a(f"""s_mul_i32 s{S_A+8}, s{S_W}, 9216
    s_add_u32 s{S_A+9}, s{S_A+8}, s{lds_base_sgpr}
    s_add_u32 s{S_A+8}, s{S_A+8}, s{s_goff}""")
    for i in range(9):
        a(f"s_mov_b32 m0, s{S_A+9}")
        a(f"s_add_u32 s{S_A+9}, s{S_A+9}, 1024")
        a(f"buffer_load_dwordx4 v1, {WSR}, s{S_A+8} offen sc1 lds")
        a(f"s_add_u32 s{S_A+8}, s{S_A+8}, 1024")

def role_t1(a, L_fail):
    WF = 64; ACC = 16; RING = 32
    vform = a.label("Lt1v");
    a(f"""
    s_lshr_b32 s{S_B}, s{S_IDX}, 5            ; mat
    s_and_b32 s{S_B+1}, s{S_IDX}, 31          ; h
    s_lshl_b32 s{S_B+2}, s{S_B}, 3
    s_add_u32 s{S_B+2}, s{S_B+2}, {KA_WQ}
    s_load_dwordx2 s[{S_A}:{S_A+1}], s[0:1], s{S_B+2}
    s_waitcnt lgkmcnt(0)
    s_mov_b32 s{S_TMP}, s{S_A}
    s_mov_b32 s{S_TMP+1}, s{S_A+1}
    s_mov_b32 s{S_TMP+2}, {576*8192}
    s_mov_b32 s{S_TMP+3}, 0x20000
    s_lshl_b32 s{S_B+3}, s{S_B+1}, 8          ; h*256 bytes
    """)
    load_wT_frags(a, TMPR, 8192, S_B+3, 576, WF, kmap='nat')
    a(f"""
    s_lshl_b32 s{S_B+4}, s{S_B}, 24
    s_add_u32 s{S_B+4}, s{S_B+4}, {WS_QF}
    s_lshl_b32 s{S_B+5}, s{S_B+1}, 13
    s_add_u32 s{S_B+4}, s{S_B+4}, s{S_B+5}
    s_lshl_b32 s{S_B+5}, s{S_W}, 11
    s_add_u32 s{S_B+4}, s{S_B+4}, s{S_B+5}
    s_cmp_eq_u32 s{S_B}, 0
    s_mov_b32 s{S_B+6}, {flag_off(FL_KV)}
    s_cselect_b32 s{S_B+6}, {flag_off(FL_Q)}, s{S_B+6}
    v_and_b32 v1, 63, v0
    v_lshlrev_b32 v1, 4, v1
    """)
    wait_init(a, L_fail)
    a(f"s_mov_b32 s{S_SEG}, 0\ns_mov_b32 s{S_B+7}, {flag_off(FL_XN)}")
    wait_flag(a, S_B+7, 1, L_fail)
    a(f"s_mov_b32 s{S_B+8}, {WS_XN}\ns_mov_b32 s{S_B+9}, 0")
    dma_seg(a, S_B+8, S_B+9)
    lp = a.label("Lt1"); nonext = a.label("Lt1"); done = a.label("Lt1"); kq = a.label("Lt1"); st = a.label("Lt1")
    a(f"""{lp}:
    s_waitcnt vmcnt(0)
    s_barrier
    s_cmp_ge_u32 s{S_SEG}, 63
    s_cbranch_scc1 {nonext}
    s_add_u32 s{S_B+7}, s{S_B+7}, {FL_STRIDE}""")
    wait_flag(a, S_B+7, 1, L_fail)
    a(f"""s_add_u32 s{S_B+8}, s{S_B+8}, {SEGB}
    s_xor_b32 s{S_B+10}, s{S_B+9}, {SEGB}""")
    dma_seg(a, S_B+8, S_B+10)
    a(f"""{nonext}:
    v_add_u32 v2, s{S_B+9}, v1""")
    for k in range(8): a(f"ds_read_b128 {v4(RING+4*k)}, v2 offset:{k*1024}")
    a(f"s_cmp_eq_u32 s{S_B}, 2\ns_cbranch_scc1 {vform}")
    def body(vmode):
        for t in range(36):
            sl = RING + 4*(t % 8)
            out = 7 if t == 0 else min(6, 35 - t)
            a(f"s_waitcnt lgkmcnt({out})")
            c = "0" if t == 0 else f"v[{ACC}:{ACC+15}]"
            if vmode: a(f"v_mfma_f32_32x32x16_bf16 v[{ACC}:{ACC+15}], {v4(sl)}, {v4(WF+4*t)}, {c}")
            else:     a(f"v_mfma_f32_32x32x16_bf16 v[{ACC}:{ACC+15}], {v4(WF+4*t)}, {v4(sl)}, {c}")
            if t >= 1 and t + 7 < 36:
                a(f"ds_read_b128 {v4(RING+4*((t+7) % 8))}, v2 offset:{(t+7)*1024}")
    body(False)
    a("s_nop 7\ns_nop 3")
    for u in range(2):
        for k in range(4):
            a(f"v_cvt_pk_bf16_f32 v{RING+4*u+k}, v{ACC+8*u+2*k}, v{ACC+8*u+2*k+1}")
    a(f"s_branch {st}")
    a(f"{vform}:")
    body(True)
    a("s_nop 7\ns_nop 3")
    for v in range(2):
        a(f"v_cvt_pk_bf16_f32 v{RING+4*v}, v{ACC+4*v}, v{ACC+4*v+1}")
        a(f"v_cvt_pk_bf16_f32 v{RING+4*v+1}, v{ACC+4*v+2}, v{ACC+4*v+3}")
        a(f"v_cvt_pk_bf16_f32 v{RING+4*v+2}, v{ACC+4*v+8}, v{ACC+4*v+9}")
        a(f"v_cvt_pk_bf16_f32 v{RING+4*v+3}, v{ACC+4*v+10}, v{ACC+4*v+11}")
    a(f"""{st}:
    s_mul_i32 s{S_A}, s{S_SEG}, {32*8192}
    s_add_u32 s{S_A}, s{S_A}, s{S_B+4}
    buffer_store_dwordx4 {v4(RING)}, v1, {WSR}, s{S_A} offen sc1
    buffer_store_dwordx4 {v4(RING+4)}, v1, {WSR}, s{S_A} offen offset:1024 sc1
    """)
    sk = a.label("Lt1")
    a(f"""s_waitcnt vmcnt(0)
    s_barrier
    s_cmp_lg_u32 s{S_W}, 0
    s_cbranch_scc1 {sk}
    s_lshl_b32 s{S_A+1}, s{S_SEG}, 6
    s_add_u32 s{S_A+1}, s{S_A+1}, s{S_B+6}""")
    signal(a, S_A+1)
    a(f"""{sk}:
    s_xor_b32 s{S_B+9}, s{S_B+9}, {SEGB}
    s_add_u32 s{S_SEG}, s{S_SEG}, 1
    s_cmp_lt_u32 s{S_SEG}, 64
    s_cbranch_scc1 {lp}
    s_waitcnt vmcnt(0)
    """)

def load_tiles_inplace(a, srd, row_stride, s_base, ntile_outer, ntile_inner, outer_step, inner_steps, lds0):
    lp = a.label("Lti"); done = a.label("Lti"); lp2 = a.label("Lti"); d2 = a.label("Lti")
    a(f"""
    v_and_b32 v1, 63, v0
    v_lshrrev_b32 v2, 2, v1            ; row (0..15)
    v_and_b32 v3, 3, v1                ; granule (0..3)
    v_mul_u32_u24 v2, {row_stride}, v2
    v_lshlrev_b32 v3, 4, v3
    v_add_u32 v3, v2, v3
    s_mov_b32 s{S_A+4}, s{S_W}
    {lp}:
    s_cmp_ge_u32 s{S_A+4}, {ntile_outer}
    s_cbranch_scc1 {done}
    s_mul_i32 s{S_A+5}, s{S_A+4}, {ntile_inner*1024}
    s_add_u32 s{S_A+5}, s{S_A+5}, {lds0}
    s_mul_i32 s{S_A+6}, s{S_A+4}, {outer_step}
    s_add_u32 s{S_A+6}, s{S_A+6}, s{s_base}
    """)
    for i in range(ntile_inner):
        a(f"s_mov_b32 m0, s{S_A+5}")
        a(f"s_add_u32 s{S_A+5}, s{S_A+5}, 1024")
        a(f"s_add_u32 s{S_A+7}, s{S_A+6}, {inner_steps[i]}")
        a(f"buffer_load_dwordx4 v3, {srd}, s{S_A+7} offen nt lds")
    a(f"""s_add_u32 s{S_A+4}, s{S_A+4}, 4
    s_branch {lp}
    {done}:
    v_lshrrev_b32 v4, 4, v1
    v_lshrrev_b32 v5, 2, v1
    v_and_b32 v5, 3, v5
    v_and_b32 v6, 3, v1
    v_lshrrev_b32 v7, 1, v4
    v_lshlrev_b32 v7, 2, v7
    v_add_u32 v7, v7, v5               ; row
    v_lshlrev_b32 v7, 6, v7
    v_and_b32 v8, 1, v4
    v_lshlrev_b32 v8, 5, v8
    v_lshlrev_b32 v6, 3, v6            ; c'*8
    v_add3_u32 v7, v7, v8, v6
    v_lshlrev_b32 v8, 4, v1            ; lane*16
    s_waitcnt vmcnt(0)
    s_mov_b32 s{S_A+4}, s{S_W}
    {lp2}:
    s_cmp_ge_u32 s{S_A+4}, {ntile_outer}
    s_cbranch_scc1 {d2}
    s_mul_i32 s{S_A+5}, s{S_A+4}, {ntile_inner*1024}
    s_add_u32 s{S_A+5}, s{S_A+5}, {lds0}
    v_add_u32 v9, s{S_A+5}, v7
    v_add_u32 v10, s{S_A+5}, v8
    """)
    for i in range(ntile_inner):
        r = 16 + 4*(i % 8)
        a(f"ds_read_b64_tr_b16 {v2(r)}, v9 offset:{i*1024}")
        a(f"ds_read_b64_tr_b16 {v2(r+2)}, v9 offset:{i*1024+512}")
        if i % 8 == 7 or i == ntile_inner-1:
            a("s_waitcnt lgkmcnt(0)")
            for k in range(i - (i % 8), i+1):
                a(f"ds_write_b128 v10, {v4(16+4*(k % 8))} offset:{k*1024}")
            a("s_waitcnt lgkmcnt(0)")
    a(f"""s_add_u32 s{S_A+4}, s{S_A+4}, 4
    s_branch {lp2}
    {d2}:
    s_barrier
    """)

def role_alpha(a, L_fail):
    h = S_IDX
    make_srd(a, S_TMP, KA_WO, 4096*1152)
    a(f"s_mul_i32 s{S_B}, s{h}, {128*1152}")
    load_tiles_inplace(a, TMPR, 1152, S_B, 18, 8, 64, [(16*k)*1152 for k in range(8)], 0)
    QF = 16
    KR = 48
    SX = 80
    SM = 96
    KM = 112
    P0 = 144; P1 = 148; PM = 152
    OB = 156
    OA = 188
    VMF = 204
    ACC = [220, 236]
    RING = 0
    a(f"""
    v_and_b32 v1, 63, v0
    v_lshlrev_b32 v2, 4, v1                 ; lane*16
    v_and_b32 v3, 31, v1
    v_lshrrev_b32 v4, 5, v1                 ; hi
    v_and_b32 v5, 7, v3
    v_lshlrev_b32 v6, 4, v4
    v_add3_u32 v5, v5, v6, 8
    v_lshlrev_b32 v5, 4, v5
    v_and_b32 v6, 15, v3
    v_lshlrev_b32 v7, 5, v4
    v_add_u32 v6, v6, v7
    v_lshlrev_b32 v6, 4, v6
    v_lshrrev_b32 v7, 4, v3
    v_lshlrev_b32 v7, 3, v7
    v_add_u32 v6, v6, v7
    v_lshrrev_b32 v7, 2, v3
    v_mul_u32_u24 v7, 4608, v7
    v_lshlrev_b32 v8, 6, v4
    v_and_b32 v9, 3, v3
    v_lshlrev_b32 v9, 4, v9
    v_add3_u32 v7, v7, v8, v9               ; v7
    v_lshlrev_b32 v8, 2, v4
    v_sub_u32 v8, v3, v8
    s_mov_b32 s{S_B+1}, {f2h(0.08838834764831845*1.4426950408889634):#x}
    s_mov_b32 s{S_B+2}, 0xff800000          ; -inf
    """)
    wait_init(a, L_fail)
    lp = a.label("Lal"); done = a.label("Lal")
    a(f"""s_mov_b32 s{S_SEG}, s{S_W}
    {lp}:
    s_cmp_ge_u32 s{S_SEG}, 64
    s_cbranch_scc1 {done}
    s_lshl_b32 s{S_B+3}, s{S_SEG}, 5
    s_add_u32 s{S_B+3}, s{S_B+3}, s{h}       ; seg*32+h
    s_lshl_b32 s{S_B+4}, s{S_B+3}, 13        ; *8192
    s_lshl_b32 s{S_B+5}, s{S_B+3}, 12        ; *4096
    """)
    flag_sgpr(a, S_B+6, FL_Q, S_SEG); wait_flag(a, S_B+6, 32, L_fail, vt=14)
    flag_sgpr(a, S_B+6, FL_KV, S_SEG); wait_flag(a, S_B+6, 64, L_fail, vt=14)
    a(f"s_add_u32 s{S_B+7}, s{S_B+4}, {WS_QF}\ns_add_u32 s{S_B+8}, s{S_B+7}, 4096")
    a(f"s_add_u32 s{S_B+9}, s{S_B+4}, {WS_KF}\ns_add_u32 s{S_B+10}, s{S_B+9}, 4096")
    for k in range(8):
        a(f"buffer_load_dwordx4 {v4(QF+4*k)}, v2, {WSR}, s{S_B+7+(k//4)} offen offset:{(k%4)*1024} sc1")
    for k in range(8):
        a(f"buffer_load_dwordx4 {v4(KR+4*k)}, v2, {WSR}, s{S_B+9+(k//4)} offen offset:{(k%4)*1024} sc1")
    for k in range(8):
        a(f"s_waitcnt vmcnt({7-k})" if False else "")
    a("s_waitcnt vmcnt(0)")
    for k in range(8):
        a(f"v_mfma_f32_32x32x16_bf16 v[{SX}:{SX+15}], {v4(KR+4*k)}, {v4(QF+4*k)}, " + ("0" if k == 0 else f"v[{SX}:{SX+15}]"))
    a(f"s_add_u32 s{S_B+9}, s{S_B+4}, {WS_VF}\ns_add_u32 s{S_B+10}, s{S_B+9}, 4096")
    a("s_nop 7")
    for k in range(8):
        a(f"buffer_load_dwordx4 {v4(KR+4*k)}, v2, {WSR}, s{S_B+9+(k//4)} offen offset:{(k%4)*1024} sc1")
    flag_sgpr(a, S_B+6, FL_M, S_SEG); wait_flag(a, S_B+6, 128, L_fail, vt=14)
    a(f"s_add_u32 s{S_B+11}, s{S_B+5}, {WS_KM}\ns_add_u32 s{S_B+12}, s{S_B+5}, {WS_VM}")
    for k in range(8):
        a(f"buffer_load_dwordx4 {v4(KM+4*k)}, v5, {WSR}, s{S_B+11} offen offset:{(k>>1)*1024+(k&1)*512} sc1")
    for w2 in range(4):
        a(f"buffer_load_dword v{VMF+4*w2}, v6, {WSR}, s{S_B+12} offen offset:{w2*1024} sc1")
        a(f"buffer_load_dword v{VMF+4*w2+1}, v6, {WSR}, s{S_B+12} offen offset:{w2*1024+256} sc1")
        a(f"v_mov_b32 v{VMF+4*w2+2}, 0\nv_mov_b32 v{VMF+4*w2+3}, 0")
    a("s_waitcnt vmcnt(8)")
    for k in range(8):
        a(f"v_mfma_f32_32x32x16_bf16 v[{SM}:{SM+15}], {v4(KM+4*k)}, {v4(QF+4*k)}, " + ("0" if k == 0 else f"v[{SM}:{SM+15}]"))
    for r in range(16):
        kk = 8*(r >> 2) + (r & 3)
        a(f"v_cmp_le_i32 vcc, {kk}, v8")
        a("s_nop 1" if r == 0 else "s_nop 0")
        a(f"v_mov_b32 v10, s{S_B+2}")
        a(f"v_cndmask_b32 v{SX+r}, v10, v{SX+r}, vcc")
    a("s_nop 7\ns_nop 3")
    a(f"v_max3_f32 v10, v{SX}, v{SX+1}, v{SX+2}")
    for r in range(3, 15, 2):
        a(f"v_max3_f32 v10, v10, v{SX+r}, v{SX+r+1}")
    a(f"v_max3_f32 v10, v10, v{SX+15}, v{SM}")
    a(f"v_max3_f32 v10, v10, v{SM+1}, v{SM+2}")
    a(f"v_max_f32 v10, v10, v{SM+3}")
    a("v_mov_b32 v11, v10\ns_nop 1\nv_permlane32_swap_b32 v10, v11\nv_max_f32 v10, v10, v11")
    a(f"v_mul_f32 v10, s{S_B+1}, v10")
    for r in list(range(SX, SX+16)) + list(range(SM, SM+4)):
        a(f"v_fma_f32 v{r}, v{r}, s{S_B+1}, -v10")
        a(f"v_exp_f32 v{r}, v{r}")
    a("s_nop 0")
    a(f"v_add_f32 v11, v{SX}, v{SX+1}")
    for r in list(range(SX+2, SX+16)) + list(range(SM, SM+4)):
        a(f"v_add_f32 v11, v11, v{r}")
    a("v_mov_b32 v12, v11\ns_nop 1\nv_permlane32_swap_b32 v11, v12\nv_add_f32 v11, v11, v12")
    a("v_rcp_f32 v11, v11\ns_nop 0")
    for r in list(range(SX, SX+16)) + list(range(SM, SM+4)):
        a(f"v_mul_f32 v{r}, v{r}, v11")
    for v, P in ((0, P0), (1, P1)):
        a(f"v_cvt_pk_bf16_f32 v{P}, v{SX+4*v}, v{SX+4*v+1}")
        a(f"v_cvt_pk_bf16_f32 v{P+1}, v{SX+4*v+2}, v{SX+4*v+3}")
        a(f"v_cvt_pk_bf16_f32 v{P+2}, v{SX+4*v+8}, v{SX+4*v+9}")
        a(f"v_cvt_pk_bf16_f32 v{P+3}, v{SX+4*v+10}, v{SX+4*v+11}")
    a(f"v_cvt_pk_bf16_f32 v{PM}, v{SM}, v{SM+1}")
    a(f"v_cvt_pk_bf16_f32 v{PM+1}, v{SM+2}, v{SM+3}")
    a(f"v_mov_b32 v{PM+2}, 0\nv_mov_b32 v{PM+3}, 0")
    a("s_waitcnt vmcnt(0)")
    a("s_nop 1")
    for w2 in range(4):
        a(f"v_mfma_f32_32x32x16_bf16 v[{OA}:{OA+15}], {v4(KR+8*w2)}, {v4(P0)}, 0")
        a(f"v_mfma_f32_32x32x16_bf16 v[{OA}:{OA+15}], {v4(KR+8*w2+4)}, {v4(P1)}, v[{OA}:{OA+15}]")
        a(f"v_mfma_f32_32x32x16_bf16 v[{OA}:{OA+15}], {v4(VMF+4*w2)}, {v4(PM)}, v[{OA}:{OA+15}]")
        a("s_nop 7\ns_nop 3")
        for u in range(2):
            for k in range(4):
                a(f"v_cvt_pk_bf16_f32 v{OB+8*w2+4*u+k}, v{OA+8*u+2*k}, v{OA+8*u+2*k+1}")
        a("s_nop 3")
    a(f"s_mul_i32 s{S_B+13}, s{S_B+3}, {SEGB}\ns_add_u32 s{S_B+13}, s{S_B+13}, {WS_PA}")
    a("v_mov_b32 v13, v2")
    n = 144
    for i in range(7):
        a(f"ds_read_b128 a[{4*(i%8)}:{4*(i%8)+3}], v13 offset:{i*1024}")
    base = 0
    for i in range(n):
        ct, ks = i // 8, i % 8
        acc = ACC[ct % 2]
        a(f"s_waitcnt lgkmcnt({min(6, n-1-i)})")
        a(f"v_mfma_f32_32x32x16_bf16 v[{acc}:{acc+15}], a[{4*(i%8)}:{4*(i%8)+3}], {v4(OB+4*ks)}, " + ("0" if ks == 0 else f"v[{acc}:{acc+15}]"))
        j = i + 7
        if j < n:
            off = j*1024 - base
            if off > 65535 - 1024:
                a(f"v_add_u32 v13, 57344, v13"); base += 57344; off = j*1024 - base
            a(f"ds_read_b128 a[{4*(j%8)}:{4*(j%8)+3}], v13 offset:{off}")
        if ks == 3 and ct >= 1 or i == n-1:
            pcs = [ct-1] if i != n-1 else [ct]
            if i == n-1: a("s_nop 7\ns_nop 3")
            for c2 in pcs:
                ac = ACC[c2 % 2]
                for u in range(2):
                    for k in range(4):
                        a(f"v_cvt_pk_bf16_f32 v{QF+4*u+k}, v{ac+8*u+2*k}, v{ac+8*u+2*k+1}")
                for u in range(2):
                    a(f"buffer_store_dwordx4 {v4(QF+4*u)}, v7, {WSR}, s{S_B+13} offen offset:{u*128} sc1")
                a(f"s_add_u32 s{S_B+13}, s{S_B+13}, 256")
                a("s_nop 1")
    a("s_waitcnt vmcnt(0)")
    flag_sgpr(a, S_B+6, FL_PA, S_SEG)
    signal(a, S_B+6, vt=14)
    a(f"""s_add_u32 s{S_SEG}, s{S_SEG}, 4
    s_branch {lp}
    {done}:
    s_waitcnt vmcnt(0)
    """)

def role_reduce(a, L_fail, final):
    NP = 36 if final else 32
    PSRC = WS_PB if final else WS_PA
    EXTRA = WS_H if final else WS_XP
    FLW = FL_PB if final else FL_PA
    ngrp = NP // 4
    if final: make_srd(a, S_IO, KA_OUT, 2048*1152)
    SEL = 16
    D = 24
    LD = 48
    a(f"""
    s_and_b32 s{S_B}, s{S_IDX}, 7             ; tg
    s_lshr_b32 s{S_B+1}, s{S_IDX}, 3          ; parity
    v_and_b32 v1, 63, v0
    v_and_b32 v2, 15, v1                      ; n / m
    v_lshrrev_b32 v3, 4, v1                   ; g
    v_mul_u32_u24 v4, {SEGB}, v3
    v_lshlrev_b32 v5, 4, v2
    s_mul_i32 s{S_B+2}, s{S_B}, 4608
    v_add3_u32 v4, v4, v5, s{S_B+2}           ; v4
    v_add_u32 v6, s{S_B+2}, v5
    v_lshrrev_b32 v7, 1, v2
    v_and_b32 v8, 1, v2
    v_mov_b32 v9, 0x3f80
    v_mov_b32 v10, 0x3f800000
    v_cmp_eq_u32 vcc, 1, v8
    s_nop 1
    v_cndmask_b32 v9, v9, v10, vcc
    """)
    for j in range(4):
        a(f"v_cmp_eq_u32 vcc, {j}, v7\ns_nop 1\nv_cndmask_b32 v{SEL+j}, 0, v9, vcc")
    a(f"""
    v_and_b32 v7, 3, v2                       ; tt
    v_bfe_u32 v8, v2, 2, 1                    ; hi
    v_lshrrev_b32 v9, 3, v2                   ; u
    ; H block offset: tg*4608 + (16bg + n)*16 + g''*8
    v_lshlrev_b32 v10, 3, v3
    v_add_u32 v11, v6, v10                    ; v11 = H store offset (bg adds 256)
    ; HN offset: p*1024 + hi*512 + token*16 + g''*8 ; token = 4tg+tt ; (bg adds 2048)
    v_lshlrev_b32 v12, 10, v9
    v_lshlrev_b32 v13, 9, v8
    v_add3_u32 v12, v12, v13, v10
    v_lshlrev_b32 v13, 4, v7
    s_lshl_b32 s{S_B+3}, s{S_B}, 6
    v_add3_u32 v12, v12, v13, s{S_B+3}        ; v12
    ; out offset: token*1152 + (32bg + 16u + 8g'' + 4hi)*2 ; (bg adds 64)
    v_lshlrev_b32 v13, 2, 0
    s_lshl_b32 s{S_B+3}, s{S_B}, 2
    v_add_u32 v13, s{S_B+3}, v7               ; token in segment
    v_mul_u32_u24 v13, 1152, v13
    v_lshlrev_b32 v14, 5, v9
    v_lshlrev_b32 v15, 4, v3
    v_add3_u32 v13, v13, v14, v15
    v_lshlrev_b32 v14, 3, v8
    v_add_u32 v13, v13, v14                   ; v13
    """.replace("v_lshlrev_b32 v13, 2, 0\n", ""))
    wait_init(a, L_fail)
    lp = a.label("Lrd"); done = a.label("Lrd")
    a(f"""s_mov_b32 s{S_SEG}, s{S_B+1}
    {lp}:
    s_cmp_ge_u32 s{S_SEG}, 64
    s_cbranch_scc1 {done}""")
    flag_sgpr(a, S_B+4, FLW, S_SEG); wait_flag(a, S_B+4, NP, L_fail)
    if final:
        flag_sgpr(a, S_B+4, FL_H, S_SEG); wait_flag(a, S_B+4, 8, L_fail)
    else:
        flag_sgpr(a, S_B+4, FL_XN, S_SEG); wait_flag(a, S_B+4, 1, L_fail)
    a(f"""s_mul_i32 s{S_B+5}, s{S_SEG}, {NP*SEGB}
    s_add_u32 s{S_B+5}, s{S_B+5}, {PSRC}
    s_mul_i32 s{S_B+6}, s{S_SEG}, {SEGB}
    s_add_u32 s{S_B+7}, s{S_B+6}, {EXTRA}
    s_lshl_b32 s{S_B+8}, s{S_W}, 8
    s_add_u32 s{S_B+5}, s{S_B+5}, s{S_B+8}
    s_add_u32 s{S_B+7}, s{S_B+7}, s{S_B+8}
    """)
    def issue(i, buf):
        r = buf
        for k in range(4): a(f"v_mov_b32 v{r+k}, 0")
        a("s_mov_b64 exec, 0xffff")
        a(f"s_add_u32 s{S_B+9}, s{S_B+7}, {i*1024}")
        a(f"buffer_load_dwordx4 {v4(r)}, v6, {WSR}, s{S_B+9} offen sc1")
        a("s_mov_b64 exec, -1")
        a(f"s_add_u32 s{S_B+9}, s{S_B+5}, {i*1024}")
        for q in range(ngrp):
            a(f"buffer_load_dwordx4 {v4(r+4+4*q)}, v4, {WSR}, s{S_B+9} offen sc1")
            if q < ngrp-1: a(f"s_add_u32 s{S_B+9}, s{S_B+9}, {4*SEGB}")
    def consume(i, buf, pending_after):
        nl = ngrp + 1
        for q in range(nl):
            a(f"s_waitcnt vmcnt({min(63, nl-1-q + pending_after)})")
            a(f"v_mfma_f32_16x16x32_bf16 {v4(D+4*i)}, {v4(SEL)}, {v4(buf+4*q)}, " + ("0" if q == 0 else v4(D+4*i)))
    bufs = [LD, LD+44]
    nl = ngrp + 1
    skip5 = a.label("Lrd")
    issue(0, bufs[0]); issue(1, bufs[1])
    consume(0, bufs[0], nl); issue(2, bufs[0])
    consume(1, bufs[1], nl); issue(3, bufs[1])
    consume(2, bufs[0], nl)
    l5 = a.label("Lrd")
    a(f"s_cmp_lt_u32 s{S_W}, 2\ns_cbranch_scc0 {skip5}")
    issue(4, bufs[0]); consume(3, bufs[1], nl); consume(4, bufs[0], 0)
    a(f"s_branch {l5}\n{skip5}:")
    consume(3, bufs[1], 0)
    for k in range(4): a(f"v_mov_b32 v{D+16+k}, 0")
    a(f"{l5}:")
    a("s_nop 7")
    for i in range(5):
        a(f"v_cvt_pk_bf16_f32 v{LD+2*i}, v{D+4*i}, v{D+4*i+1}")
        a(f"v_cvt_pk_bf16_f32 v{LD+2*i+1}, v{D+4*i+2}, v{D+4*i+3}")
    if final:
        a(f"s_mul_i32 s{S_B+10}, s{S_SEG}, {32*1152}")
        a(f"s_lshl_b32 s{S_B+11}, s{S_W}, 6\ns_add_u32 s{S_B+10}, s{S_B+10}, s{S_B+11}")
        a("s_mov_b32 exec_hi, 0")
        for i in range(4):
            a(f"buffer_store_dwordx2 {v2(LD+2*i)}, v13, {IOR}, s{S_B+10} offen offset:{i*256}")
        sk = a.label("Lrd")
        a(f"s_cmp_lt_u32 s{S_W}, 2\ns_cbranch_scc0 {sk}")
        a(f"buffer_store_dwordx2 {v2(LD+8)}, v13, {IOR}, s{S_B+10} offen offset:{4*256}")
        a(f"{sk}:\ns_mov_b64 exec, -1")
    else:
        a(f"s_add_u32 s{S_B+10}, s{S_B+6}, {WS_H}\ns_add_u32 s{S_B+10}, s{S_B+10}, s{S_B+8}")
        a("s_mov_b32 exec_hi, 0")
        for i in range(4):
            a(f"buffer_store_dwordx2 {v2(LD+2*i)}, v11, {WSR}, s{S_B+10} offen offset:{i*1024} sc1")
        sk = a.label("Lrd")
        a(f"s_cmp_lt_u32 s{S_W}, 2\ns_cbranch_scc0 {sk}")
        a(f"s_add_u32 s{S_B+11}, s{S_B+10}, 4096")
        a(f"buffer_store_dwordx2 {v2(LD+8)}, v11, {WSR}, s{S_B+11} offen sc1")
        a(f"{sk}:\ns_mov_b64 exec, -1")
        for i in range(5):
            for k in range(2):
                a(f"v_lshlrev_b32 v{D+4*i+2*k}, 16, v{LD+2*i+k}")
                a(f"v_and_b32 v{D+4*i+2*k+1}, 0xffff0000, v{LD+2*i+k}")
        def allsum(r):
            a("s_nop 1")
            a(f"v_add_f32_dpp v{r}, v{r}, v{r} row_ror:4 row_mask:0xf bank_mask:0xf")
            a("s_nop 1")
            a(f"v_add_f32_dpp v{r}, v{r}, v{r} row_ror:8 row_mask:0xf bank_mask:0xf")
            a(f"v_mov_b32 v{r+1}, v{r}\ns_nop 1\nv_permlane16_swap_b32 v{r}, v{r+1}\nv_add_f32 v{r}, v{r}, v{r+1}")
        a(f"v_and_b32 v20, 3, v1\nv_lshlrev_b32 v20, 2, v20\ns_lshl_b32 s{S_B+11}, s{S_W}, 4\nv_add_u32 v21, s{S_B+11}, v20")
        a(f"v_add_f32 v22, v{D}, v{D+1}")
        for k in range(2, 20): a(f"v_add_f32 v22, v22, v{D+k}")
        allsum(22)
        a("s_mov_b64 exec, 0xf\nds_write_b32 v21, v22\ns_mov_b64 exec, -1\ns_waitcnt lgkmcnt(0)\ns_barrier")
        for w2 in range(4): a(f"ds_read_b32 v{44+w2}, v20 offset:{w2*16}")
        a("s_waitcnt lgkmcnt(0)\nv_add_f32 v44, v44, v45\nv_add_f32 v46, v46, v47\nv_add_f32 v44, v44, v46")
        a(f"v_mul_f32 v44, {f2h(1.0/576):#x}, v44")
        a("v_mov_b32 v22, 0")
        for k in range(16):
            a(f"v_sub_f32 v23, v{D+k}, v44\nv_fmac_f32 v22, v23, v23")
        sk2 = a.label("Lrd")
        a(f"s_cmp_lt_u32 s{S_W}, 2\ns_cbranch_scc0 {sk2}")
        for k in range(16, 20):
            a(f"v_sub_f32 v23, v{D+k}, v44\nv_fmac_f32 v22, v23, v23")
        a(f"{sk2}:")
        allsum(22)
        a("s_mov_b64 exec, 0xf\nds_write_b32 v21, v22 offset:64\ns_mov_b64 exec, -1\ns_waitcnt lgkmcnt(0)\ns_barrier")
        for w2 in range(4): a(f"ds_read_b32 v{45+w2}, v20 offset:{64+w2*16}")
        a("s_waitcnt lgkmcnt(0)\nv_add_f32 v45, v45, v46\nv_add_f32 v47, v47, v48\nv_add_f32 v45, v45, v47")
        a(f"v_mul_f32 v45, {f2h(1.0/576):#x}, v45")
        round_bf16(a, 45, 45, 46)
        a(f"v_add_f32 v45, {f2h(1e-5):#x}, v45")
        round_bf16(a, 45, 45, 46)
        a("v_sqrt_f32 v45, v45\ns_nop 0")
        round_bf16(a, 45, 45, 46)
        a("v_rcp_f32 v45, v45")
        round_bf16(a, 44, 44, 46)
        for i in range(5):
            for k in range(2):
                r = D+4*i+2*k
                a(f"v_sub_f32 v46, v{r}, v44\nv_sub_f32 v47, v{r+1}, v44")
                a("v_cvt_pk_bf16_f32 v46, v46, v47")
                a("v_and_b32 v47, 0xffff0000, v46\nv_lshlrev_b32 v46, 16, v46")
                a("v_mul_f32 v46, v46, v45\nv_mul_f32 v47, v47, v45")
                a(f"v_cvt_pk_bf16_f32 v{LD+16+2*i+k}, v46, v47")
        a(f"s_add_u32 s{S_B+10}, s{S_B+6}, {WS_HN}\ns_lshl_b32 s{S_B+11}, s{S_W}, 11\ns_add_u32 s{S_B+10}, s{S_B+10}, s{S_B+11}")
        a("s_mov_b32 exec_hi, 0")
        for i in range(4):
            a(f"buffer_store_dwordx2 {v2(LD+16+2*i)}, v12, {WSR}, s{S_B+10} offen sc1")
            a(f"s_add_u32 s{S_B+10}, s{S_B+10}, 8192")
        sk = a.label("Lrd")
        a(f"s_cmp_lt_u32 s{S_W}, 2\ns_cbranch_scc0 {sk}")
        a(f"buffer_store_dwordx2 {v2(LD+16+8)}, v12, {WSR}, s{S_B+10} offen sc1")
        a(f"{sk}:\ns_mov_b64 exec, -1")
        a("s_waitcnt vmcnt(0)\ns_barrier")
        sk = a.label("Lrd")
        a(f"s_cmp_lg_u32 s{S_W}, 0\ns_cbranch_scc1 {sk}")
        flag_sgpr(a, S_B+4, FL_H, S_SEG)
        signal(a, S_B+4)
        a(f"{sk}:")
    a(f"""s_add_u32 s{S_SEG}, s{S_SEG}, 2
    s_branch {lp}
    {done}:
    s_waitcnt vmcnt(0)
    """)

def role_ffn(a, L_fail):
    W1 = 64
    ACC1 = 16
    RING = 32
    HID = 208
    make_srd(a, S_TMP, KA_W1, 576*9216)
    a(f"s_lshl_b32 s{S_B}, s{S_IDX}, 8")
    load_wT_frags(a, TMPR, 9216, S_B, 576, W1, kmap='pc')
    make_srd(a, S_TMP, KA_W2, 4608*1152)
    a(f"s_mul_i32 s{S_B}, s{S_IDX}, {128*1152}")
    load_tiles_inplace(a, TMPR, 1152, S_B, 18, 8, 64, [(16*k)*1152 for k in range(8)], 0)
    a(f"""v_and_b32 v1, 63, v0
    v_lshlrev_b32 v1, 4, v1
    s_lshl_b32 s{S_B+1}, s{S_W}, 13
    v_add_u32 v2, s{S_B+1}, v1""")
    sk = a.label("Lff")
    for i in range(5):
        if i == 4: a(f"s_cmp_lt_u32 s{S_W}, 2\ns_cbranch_scc0 {sk}")
        for ks in range(8):
            a(f"ds_read_b128 a[{(i*8+ks)*4}:{(i*8+ks)*4+3}], v2 offset:{ks*1024}")
        a("s_waitcnt lgkmcnt(0)")
        a("v_add_u32 v2, 32768, v2")
    a(f"{sk}:\ns_barrier")
    XCH = 73728
    a(f"""
    v_and_b32 v3, 63, v0
    v_and_b32 v4, 31, v3                    ; token n
    v_lshrrev_b32 v5, 5, v3                 ; hi
    v_lshrrev_b32 v7, 2, v4
    v_mul_u32_u24 v7, 4608, v7
    v_lshlrev_b32 v8, 6, v5
    v_and_b32 v9, 3, v4
    v_lshlrev_b32 v9, 4, v9
    v_add3_u32 v7, v7, v8, v9
    v_add_u32 v8, {XCH}, v1
    s_lshl_b32 s{S_B+1}, s{S_W}, 11
    v_add_u32 v9, s{S_B+1}, v8
    """)
    wait_init(a, L_fail)
    a(f"s_mov_b32 s{S_SEG}, 0\ns_mov_b32 s{S_B+7}, {flag_off(FL_H)}")
    wait_flag(a, S_B+7, 8, L_fail)
    a(f"s_mov_b32 s{S_B+8}, {WS_HN}\ns_mov_b32 s{S_B+9}, 0")
    dma_seg(a, S_B+8, S_B+9)
    lp = a.label("Lff")
    a(f"""{lp}:
    s_waitcnt vmcnt(0)
    s_barrier
    v_add_u32 v2, s{S_B+9}, v1""")
    for k in range(8): a(f"ds_read_b128 {v4(RING+4*k)}, v2 offset:{k*1024}")
    for t in range(36):
        sl = RING + 4*(t % 8)
        a(f"s_waitcnt lgkmcnt({7 if t == 0 else min(6, 35 - t)})")
        a(f"v_mfma_f32_32x32x16_bf16 v[{ACC1}:{ACC1+15}], {v4(W1+4*t)}, {v4(sl)}, " + ("0" if t == 0 else f"v[{ACC1}:{ACC1+15}]"))
        if t >= 1 and t + 7 < 36:
            a(f"ds_read_b128 {v4(RING+4*((t+7) % 8))}, v2 offset:{(t+7)*1024}")
    a("s_nop 7\ns_nop 3")
    for r in range(16): a(f"v_max_f32 v{ACC1+r}, 0, v{ACC1+r}")
    for u in range(2):
        for k in range(4):
            a(f"v_cvt_pk_bf16_f32 v{RING+4*u+k}, v{ACC1+8*u+2*k}, v{ACC1+8*u+2*k+1}")
    a(f"ds_write_b128 v9, {v4(RING)}\nds_write_b128 v9, {v4(RING+4)} offset:1024")
    a("s_waitcnt lgkmcnt(0)\ns_barrier")
    for k in range(8): a(f"ds_read_b128 {v4(HID+4*k)}, v8 offset:{k*1024}")
    a("s_waitcnt lgkmcnt(0)")
    a(f"""s_mul_i32 s{S_B+13}, s{S_SEG}, 36
    s_add_u32 s{S_B+13}, s{S_B+13}, s{S_IDX}
    s_mul_i32 s{S_B+13}, s{S_B+13}, {SEGB}
    s_add_u32 s{S_B+13}, s{S_B+13}, {WS_PB}
    s_lshl_b32 s{S_B+14}, s{S_W}, 8
    s_add_u32 s{S_B+13}, s{S_B+13}, s{S_B+14}""")
    def ffn2(i):
        ac = 160 + 16*(i % 2)
        for ks in range(8):
            a(f"v_mfma_f32_32x32x16_bf16 a[{ac}:{ac+15}], a[{(i*8+ks)*4}:{(i*8+ks)*4+3}], {v4(HID+4*ks)}, " + ("0" if ks == 0 else f"a[{ac}:{ac+15}]"))
    def epi(i):
        ac = 160 + 16*(i % 2)
        for r in range(16): a(f"v_accvgpr_read_b32 v{ACC1+r}, a{ac+r}")
        for u in range(2):
            for k in range(4):
                a(f"v_cvt_pk_bf16_f32 v{RING+8+4*u+k}, v{ACC1+8*u+2*k}, v{ACC1+8*u+2*k+1}")
        for u in range(2):
            a(f"buffer_store_dwordx4 {v4(RING+8+4*u)}, v7, {WSR}, s{S_B+13} offen offset:{u*128} sc1")
        a(f"s_add_u32 s{S_B+13}, s{S_B+13}, 1024")
        a("s_nop 1")
    ffn2(0); ffn2(1); epi(0); ffn2(2); epi(1); ffn2(3); epi(2)
    sk4 = a.label("Lff"); e4 = a.label("Lff")
    a(f"s_cmp_lt_u32 s{S_W}, 2\ns_cbranch_scc0 {sk4}")
    ffn2(4); epi(3); a("s_nop 7\ns_nop 3"); epi(4)
    a(f"s_branch {e4}\n{sk4}:\ns_nop 7\ns_nop 3")
    epi(3)
    a(f"{e4}:\ns_waitcnt vmcnt(0)\ns_barrier")
    sk = a.label("Lff")
    a(f"s_cmp_lg_u32 s{S_W}, 0\ns_cbranch_scc1 {sk}")
    flag_sgpr(a, S_A+1, FL_PB, S_SEG)
    signal(a, S_A+1)
    fin = a.label("Lff")
    a(f"""{sk}:
    s_add_u32 s{S_SEG}, s{S_SEG}, 1
    s_cmp_lt_u32 s{S_SEG}, 64
    s_cbranch_scc0 {fin}
    s_add_u32 s{S_B+7}, s{S_B+7}, {FL_STRIDE}""")
    wait_flag(a, S_B+7, 8, L_fail)
    a(f"s_add_u32 s{S_B+8}, s{S_B+8}, {SEGB}\ns_xor_b32 s{S_B+9}, s{S_B+9}, {SEGB}")
    dma_seg(a, S_B+8, S_B+9)
    a(f"""s_branch {lp}
    {fin}:
    s_waitcnt vmcnt(0)
    """)
```

```python
import sys
from asmlib import *
from layout import *
import roles as R
import importlib
args = dict(x.split("=") for x in sys.argv[2:])
T = importlib.import_module(args.get("mod","team8"))
KN = args.get("kn", "sequential_preLN__memory_aug_recurrent_mem_tr__dense_activation_relu__prompt_kernel")
enable = set(args.get("roles","team,t1,alpha,ffn,b0,gamma,ln").split(","))
report = int(args.get("report","0"))
hdr = open("sequential_preLN__memory_aug_recurrent_mem_tr__dense_activation_relu__prompt.s.ref").read().split("\n")
a = Asm()
for l in hdr:
    if l.startswith("; @launch"): a.raw("; @launch grid=(256,1,1) block=(256,1,1) lds=163840")
    elif l.startswith(";"): a.raw(l)
    else: break
a.raw('.amdgcn_target "amdgcn-amd-amdhsa--gfx950"')
a.raw(".text")
a.raw(kernel_header(KN))
S_WS, S_DBG, S_W = 8, 16, 20
S_ROLE = 4
a(f"""
s_cmp_ge_u32 s2, 256
s_cbranch_scc1 L_end
s_load_dwordx2 s[4:5], s[0:1], {KA_DBG}
s_load_dwordx2 s[6:7], s[0:1], {KA_WS}
s_getreg_b32 s3, hwreg(HW_REG_XCC_ID)
s_and_b32 s3, s3, 7
v_lshrrev_b32 v1, 6, v0
s_waitcnt lgkmcnt(0)
s_mov_b32 s{S_WS}, s6
s_mov_b32 s{S_WS+1}, s7
s_mov_b32 s{S_WS+2}, {WS_SIZE}
s_mov_b32 s{S_WS+3}, 0x20000
s_mov_b32 s{S_DBG}, s4
s_mov_b32 s{S_DBG+1}, s5
s_mov_b32 s{S_DBG+2}, 256
s_mov_b32 s{S_DBG+3}, 0x20000
v_readfirstlane_b32 s{S_W}, v1
s_mov_b32 s23, 0
s_cmp_lg_u32 s{S_W}, 0
s_cbranch_scc1 L_norank
s_lshl_b32 s24, s3, 2
v_mov_b32 v3, s24
v_mov_b32 v4, 1
s_mov_b64 exec, 1
buffer_atomic_add v4, v3, s[{S_DBG}:{S_DBG+3}], 0 offen sc0 sc1
s_waitcnt vmcnt(0)
v_readfirstlane_b32 s25, v4
s_mov_b32 s26, 0                     ; role: team
s_cmp_eq_u32 s3, 0
s_cselect_b32 s27, 1, 0
s_cmp_lt_u32 s25, 32
s_cselect_b32 s27, s27, 0            ; 1 = native team member
s_cmp_eq_u32 s27, 1
s_cbranch_scc1 L_have
v_mov_b32 v3, {DB_WORKER*4}
v_mov_b32 v4, 1
buffer_atomic_add v4, v3, s[{S_DBG}:{S_DBG+3}], 0 offen sc0 sc1
s_waitcnt vmcnt(0)
v_readfirstlane_b32 s25, v4
s_mov_b32 s26, 1
s_cmp_lt_u32 s25, 224
s_cbranch_scc1 L_have
; drafted into the team (fewer than 32 workgroups on XCC 0): head = 31 - (wi-224), mark impure
s_sub_u32 s25, 255, s25
s_mov_b32 s26, 0
v_mov_b32 v3, {DB_IMPURE*4}
v_mov_b32 v4, 1
buffer_atomic_add v4, v3, s[{S_DBG}:{S_DBG+3}], 0 offen sc1
s_waitcnt vmcnt(0)
L_have:
s_mov_b64 exec, -1
s_lshl_b32 s26, s26, 16
s_or_b32 s25, s25, s26
v_mov_b32 v5, s25
v_mov_b32 v6, 0
ds_write_b32 v6, v5
s_waitcnt lgkmcnt(0)
L_norank:
s_barrier
v_mov_b32 v6, 0
ds_read_b32 v5, v6
s_waitcnt lgkmcnt(0)
v_readfirstlane_b32 s25, v5
s_barrier
s_and_b32 s21, s25, 0xffff
s_lshr_b32 s26, s25, 16
s_cmp_eq_u32 s26, 0
s_cbranch_scc1 L_team
""")
a(f"""
s_cmp_lg_u32 s21, 0
s_cbranch_scc1 L_noinit
v_and_b32 v1, 63, v0
v_lshlrev_b32 v1, 4, v1
v_mov_b32 v4, 0
v_mov_b32 v5, 0
v_mov_b32 v6, 0
v_mov_b32 v7, 0
s_lshl_b32 s24, s{S_W}, 13
s_add_u32 s24, s24, {WS_FLAGS}
""")
for i in range(8):
    a(f"buffer_store_dwordx4 v[4:7], v1, s[{S_WS}:{S_WS+3}], s24 offen sc1")
    a("s_add_u32 s24, s24, 1024")
a(f"""s_waitcnt vmcnt(0)
s_barrier
s_cmp_lg_u32 s{S_W}, 0
s_cbranch_scc1 L_noinit
s_mov_b64 exec, 1
v_mov_b32 v3, {DB_INIT*4}
v_mov_b32 v4, 1
buffer_atomic_add v4, v3, s[{S_DBG}:{S_DBG+3}], 0 offen sc1
s_mov_b64 exec, -1
L_noinit:
s_cmp_lt_u32 s21, 96
s_cbranch_scc1 L_t1
s_cmp_lt_u32 s21, 128
s_cbranch_scc1 L_alpha
s_cmp_lt_u32 s21, 164
s_cbranch_scc1 L_ffn
s_mov_b32 s58, s21
s_sub_u32 s21, s21, 164
""")
if "ln" in enable:
    R.wait_init(a, "L_wfail")
    R.role_ln(a, "L_wfail", 0, 60)
a("""s_mov_b32 s21, s58
s_cmp_lt_u32 s21, 180
s_cbranch_scc1 L_b0
s_cmp_lt_u32 s21, 196
s_cbranch_scc1 L_gamma
s_branch L_end
""")
def far(label_from, fn, name):
    a(f"{label_from}:")
    if name in enable: fn()
    a("s_branch L_end")
far("L_t1", lambda: R.role_t1(a, "L_wfail"), "t1")
far("L_alpha", lambda: (a("s_sub_u32 s21, s21, 96"), R.role_alpha(a, "L_wfail")), "alpha")
far("L_ffn", lambda: (a("s_sub_u32 s21, s21, 128"), R.role_ffn(a, "L_wfail")), "ffn")
far("L_b0", lambda: (a("s_sub_u32 s21, s21, 164"), R.role_reduce(a, "L_wfail", False)), "b0")
far("L_gamma", lambda: (a("s_sub_u32 s21, s21, 180"), R.role_reduce(a, "L_wfail", True)), "gamma")
a("L_wfail:\ns_branch L_end")
a("L_team:")
if "team" in enable:
    g = {k: v for k, v in vars(T).items() if k.startswith(("S_", "V_"))}
    S_T0 = T.S_T0
    a(f"""
    s_and_b32 s{S_T0}, s{T.S_W}, 1
    s_lshl_b32 s{S_T0}, s{S_T0}, 5
    s_add_u32 s{T.S_CT}, s{T.S_H}, s{S_T0}
    s_cmp_lt_u32 s{T.S_CT}, 36
    s_cselect_b32 s{S_T0+1}, 1, 0
    s_cmp_lt_u32 s{T.S_W}, 2
    s_cselect_b32 s{T.S_ISRED}, s{S_T0+1}, 0
    s_cselect_b32 s{T.S_ISRST}, 0, s{S_T0+1}
    s_min_u32 s{T.S_CT}, s{T.S_CT}, 35
    s_lshr_b32 s{S_T0}, s{T.S_CT}, 2
    s_and_b32 s{S_T0+1}, s{S_T0}, 1
    s_cmp_eq_u32 s{S_T0+1}, 0
    s_cselect_b32 s{T.S_EARLY}, 1, 0
    s_cmp_eq_u32 s{S_T0}, 8
    s_cselect_b32 s{T.S_EARLY}, 0, s{T.S_EARLY}
    """)
    t = T.Team(a, stamps=False, nsteps=64, d1=int(args.get('d1','800')), d2=int(args.get('d2','0')), d3=int(args.get('d3','320')), flags=True, spin_cap=3000000)
    t.consts()
    t.init_mailboxes('sc1')
    t.load_weights()
    a("s_waitcnt vmcnt(0) lgkmcnt(0)")
    t.team_barrier(DB_TEAMBAR*4)
    W = f"s[{S_WS}:{S_WS+3}]"
    def poll(srd, off, target):
        lp = a.label("Ltp"); ok = a.label("Ltp")
        a(f"""s_mov_b64 exec, 1
        {lp}:
        s_mov_b32 s{S_T0+1}, {off}
        buffer_load_dword v20, off, {srd}, s{S_T0+1} sc1
        s_waitcnt vmcnt(0)
        v_readfirstlane_b32 s{S_T0}, v20
        s_cmp_ge_u32 s{S_T0}, {target}
        s_cbranch_scc1 {ok}
        s_add_u32 s{T.S_SPIN}, s{T.S_SPIN}, 1
        s_cmp_gt_u32 s{T.S_SPIN}, 3000000
        s_cbranch_scc1 L_tfail
        s_sleep 2
        s_branch {lp}
        {ok}:
        s_mov_b64 exec, -1""")
    a(f"s_mov_b32 s{T.S_SPIN}, 0")
    poll(f"s[{S_DBG}:{S_DBG+3}]", DB_INIT*4, 1)
    poll(W, flag_off(FL_KV, 0), 64)
    poll(W, flag_off(FL_KV, 1), 64)
    a(f"""s_mov_b64 exec, 1
    s_mov_b32 s{S_T0+1}, {DB_IMPURE*4}
    buffer_load_dword v20, off, s[{S_DBG}:{S_DBG+3}], s{S_T0+1} sc1
    s_waitcnt vmcnt(0)
    v_readfirstlane_b32 s{S_T0}, v20
    s_mov_b64 exec, -1
    s_cmp_lg_u32 s{S_T0}, 0
    s_cbranch_scc1 L_slowteam
    """)
    t.main_loop("L_tfail", "L_tdone", sc="", tag="f")
    a("L_slowteam:")
    t2 = T.Team(a, stamps=False, nsteps=64, d1=1600, d2=600, d3=320, flags=True, spin_cap=3000000)
    t2.main_loop("L_tfail", "L_tdone", sc="sc1", tag="s")
    a(f"""L_tdone:
    s_waitcnt vmcnt(0)
    s_mov_b32 s{S_T0}, {flag_off(FL_M, 63)}
    s_mov_b64 exec, 1
    v_mov_b32 v20, 1
    buffer_atomic_add v20, off, {W}, s{S_T0} sc1
    s_mov_b64 exec, -1
    L_tfail:
    """)
a("""
L_end:
s_waitcnt vmcnt(0)
s_endpgm
""")
a.raw(kernel_desc(KN))
open(sys.argv[1],"w").write(a.text())
```

```python
INB_SLOT = 36*32*256
WS_INBOX = 0
WS_MEMG  = 0xD8000
MEM_SLOT = 9216
WS_FLAGS = 0x5C0000
FG_QKV = WS_FLAGS
FG_M   = WS_FLAGS + 0x8000
FG_PA  = WS_FLAGS + 0x10000
FG_H   = WS_FLAGS + 0x12000
FG_PB  = WS_FLAGS + 0x14000
FG_XN  = WS_FLAGS + 0x18000
FG_DUMMY = WS_FLAGS + 0x19000
FLAGS_BYTES = 0x1A000
WS_REP   = 0xE0000
WS_XN    = 0x100000
WS_XP    = 0x380000
WS_QF    = 0x600000
WS_KF    = 0x1600000
WS_VF    = 0x2600000
WS_KM    = 0x3600000
WS_VM    = 0x3E00000
WS_PA    = 0x4600000
WS_H     = 0x8E00000
WS_HN    = 0x9100000
WS_PB    = 0x9400000
WS_SIZE  = 0x10000000
SEGB     = 36864
KA_X, KA_MEM0, KA_WQ, KA_WK, KA_WV, KA_WO, KA_SEG, KA_BX, KA_W1, KA_W2, KA_OUT, KA_DBG, KA_WS = [8*i for i in range(13)]
DB_XCC = 0
DB_WORKER = 8
DB_TEAMBAR = 9
DB_IMPURE = 10
DB_INIT = 11
```

```python
from asmlib import *
from layout import *
import struct

S_WS = 8; S_TMP = 12; S_DBG = 16
S_W = 20; S_IDX = 21; S_SEG = 22; S_SPIN = 23
S_A = 24
S_IO = 40
S_B = 44
WSR = f"s[{S_WS}:{S_WS+3}]"
TMPR = f"s[{S_TMP}:{S_TMP+3}]"
IOR = f"s[{S_IO}:{S_IO+3}]"
def v4(b): return f"v[{b}:{b+3}]"
def v2(b): return f"v[{b}:{b+1}]"
def f2h(x): return struct.unpack("<I", struct.pack("<f", x))[0]
CAP = 3000000

def make_srd(a, dst, ka_off, nbytes):
    a(f"""s_load_dwordx2 s[{S_A}:{S_A+1}], s[0:1], {ka_off}
    s_waitcnt lgkmcnt(0)
    s_mov_b32 s{dst}, s{S_A}
    s_mov_b32 s{dst+1}, s{S_A+1}
    s_mov_b32 s{dst+2}, {nbytes}
    s_mov_b32 s{dst+3}, 0x20000""")

def wait_flags(a, s_off, lo, hi, L_fail, vt=250, sleep=2):
    lp = a.label("Lwf"); ok = a.label("Lwf")
    mask = ((1 << hi) - 1) ^ ((1 << lo) - 1)
    a(f"""s_mov_b32 exec_lo, {mask & 0xffffffff:#x}
    s_mov_b32 exec_hi, {mask >> 32:#x}
    v_mbcnt_lo_u32_b32 v{vt}, -1, 0
    v_mbcnt_hi_u32_b32 v{vt}, -1, v{vt}
    v_lshlrev_b32 v{vt}, 2, v{vt}
    {lp}:
    buffer_load_dword v{vt+1}, v{vt}, {WSR}, s{s_off} offen sc1
    s_waitcnt vmcnt(0)
    v_cmp_eq_u32 vcc, 0, v{vt+1}
    s_cbranch_vccz {ok}
    s_add_u32 s{S_SPIN}, s{S_SPIN}, 1
    s_cmp_gt_u32 s{S_SPIN}, {CAP}
    s_cbranch_scc1 {L_fail}
    s_sleep {sleep}
    s_branch {lp}
    {ok}:
    s_mov_b64 exec, -1""")

def wg_wait_flags(a, s_off, lo, hi, L_fail):
    sk = a.label("Lww")
    a(f"s_cmp_lg_u32 s{S_W}, 0\ns_cbranch_scc1 {sk}")
    wait_flags(a, s_off, lo, hi, L_fail)
    a(f"{sk}:\ns_barrier")

REPORT = [False]
def stamp_max(a, stage, vt):
    if not REPORT[0]: return
    a(f"""s_memrealtime s[60:61]
    s_waitcnt lgkmcnt(0)
    s_lshl_b32 s62, s{S_SEG}, 6
    s_add_u32 s62, s62, {WS_REP + stage*4096}
    s_mov_b64 exec, 1
    v_mov_b32 v{vt}, s60
    buffer_atomic_umax v{vt}, off, {WSR}, s62 sc1
    s_mov_b64 exec, -1""")
def signal(a, s_off, vt=250, stage=7):
    stamp_max(a, stage, vt)
    a(f"""s_mov_b64 exec, 1
    v_mov_b32 v{vt}, 1
    buffer_store_dword v{vt}, off, {WSR}, s{s_off} sc1
    s_mov_b64 exec, -1""")

def flag_addr(a, dst, base, s_seg, seg_stride, s_idx=None, idx_stride=0, const=0):
    a(f"s_mul_i32 s{dst}, s{s_seg}, {seg_stride}")
    a(f"s_add_u32 s{dst}, s{dst}, {base + const}")
    if s_idx is not None:
        a(f"s_mul_i32 s{S_A+13}, s{s_idx}, {idx_stride}")
        a(f"s_add_u32 s{dst}, s{dst}, s{S_A+13}")

def wait_init(a, L_fail):
    lp = a.label("Lwi"); ok = a.label("Lwi")
    a(f"""s_mov_b64 exec, 1
    v_mov_b32 v250, {DB_INIT*4}
    {lp}:
    buffer_load_dword v251, v250, s[{S_DBG}:{S_DBG+3}], 0 offen sc1
    s_waitcnt vmcnt(0)
    v_readfirstlane_b32 s{S_A+14}, v251
    s_cmp_lg_u32 s{S_A+14}, 0
    s_cbranch_scc1 {ok}
    s_add_u32 s{S_SPIN}, s{S_SPIN}, 1
    s_cmp_gt_u32 s{S_SPIN}, {CAP}
    s_cbranch_scc1 {L_fail}
    s_sleep 1
    s_branch {lp}
    {ok}:
    s_mov_b64 exec, -1""")

def round_bf16(a, dst, src, tmp):
    a(f"v_cvt_pk_bf16_f32 v{tmp}, v{src}, v{src}")
    a(f"v_lshlrev_b32 v{dst}, 16, v{tmp}")

def reduce8(a, r, t):
    for mod in ("quad_perm:[1,0,3,2]", "quad_perm:[2,3,0,1]", "row_half_mirror"):
        a("s_nop 1")
        a(f"v_add_f32_dpp v{r}, v{r}, v{r} {mod} row_mask:0xf bank_mask:0xf")

def role_ln(a, L_fail, first, stride):
    make_srd(a, S_IO, KA_X, 2048*1152)
    lp = a.label("Lln"); done = a.label("Lln")
    a(f"""
    v_and_b32 v1, 63, v0
    v_lshrrev_b32 v2, 3, v1            ; l>>3
    v_and_b32 v3, 7, v1                ; part
    s_lshl_b32 s{S_A}, s{S_W}, 3
    v_add_u32 v4, s{S_A}, v2           ; token
    v_mul_u32_u24 v5, 1152, v4
    v_lshlrev_b32 v6, 4, v3
    v_add_u32 v5, v5, v6
    v_lshrrev_b32 v6, 1, v3
    v_lshlrev_b32 v7, 10, v6
    v_and_b32 v8, 1, v3
    v_lshlrev_b32 v9, 9, v8
    v_lshlrev_b32 v10, 4, v4
    v_add3_u32 v7, v7, v9, v10
    v_lshrrev_b32 v9, 2, v4
    v_mul_u32_u24 v9, 4608, v9
    v_and_b32 v10, 3, v4
    v_lshlrev_b32 v10, 4, v10
    v_lshlrev_b32 v11, 7, v6
    v_lshlrev_b32 v12, 3, v8
    v_add3_u32 v9, v9, v10, v11
    v_add_u32 v9, v9, v12
    s_mov_b32 s{S_SEG}, s{S_IDX}
    {lp}:
    s_cmp_ge_u32 s{S_SEG}, 64
    s_cbranch_scc1 {done}
    s_mul_i32 s{S_A}, s{S_SEG}, {SEGB}
    """)
    X = 32; F = 80
    for i in range(9):
        a(f"buffer_load_dwordx4 {v4(X+4*i)}, v5, {IOR}, s{S_A} offen offset:{i*128} nt")
    a(f"s_add_u32 s{S_A+1}, s{S_A}, {WS_XP}")
    a(f"s_add_u32 s{S_A+2}, s{S_A+1}, 4096")
    a("s_waitcnt vmcnt(0)")
    for i in range(9):
        so = S_A+1 if i < 8 else S_A+2
        off = (i % 8)*512
        a(f"buffer_store_dwordx2 {v2(X+4*i)}, v9, {WSR}, s{so} offen offset:{off} sc1")
        a(f"buffer_store_dwordx2 {v2(X+4*i+2)}, v9, {WSR}, s{so} offen offset:{off+64} sc1")
    for k in range(36):
        a(f"v_lshlrev_b32 v{F+2*k}, 16, v{X+k}")
        a(f"v_and_b32 v{F+2*k+1}, 0xffff0000, v{X+k}")
    a(f"v_pk_add_f32 v[14:15], {v2(F)}, {v2(F+2)}")
    for k in range(2, 36):
        a(f"v_pk_add_f32 v[14:15], v[14:15], {v2(F+2*k)}")
    a("v_add_f32 v14, v14, v15")
    reduce8(a, 14, 15)
    a(f"v_mul_f32 v14, {f2h(1.0/576):#x}, v14")
    a("v_mov_b32 v16, 0\nv_mov_b32 v17, 0")
    for k in range(36):
        a(f"v_pk_add_f32 v[18:19], {v2(F+2*k)}, v[14:15] op_sel_hi:[1,0] neg_lo:[0,1] neg_hi:[0,1]")
        a(f"v_pk_fma_f32 v[16:17], v[18:19], v[18:19], v[16:17]")
    a("v_add_f32 v16, v16, v17")
    reduce8(a, 16, 17)
    a(f"v_mul_f32 v16, {f2h(1.0/576):#x}, v16")
    round_bf16(a, 16, 16, 17)
    a(f"v_add_f32 v16, {f2h(1e-5):#x}, v16")
    round_bf16(a, 16, 16, 17)
    a("v_sqrt_f32 v16, v16\ns_nop 0")
    round_bf16(a, 16, 16, 17)
    a("v_rcp_f32 v16, v16")
    round_bf16(a, 14, 14, 17)
    for k in range(36):
        a(f"v_pk_add_f32 v[18:19], {v2(F+2*k)}, v[14:15] op_sel_hi:[1,0] neg_lo:[0,1] neg_hi:[0,1]")
        a(f"v_cvt_pk_bf16_f32 v20, v18, v19")
        a(f"v_lshlrev_b32 v18, 16, v20")
        a(f"v_and_b32 v19, 0xffff0000, v20")
        a(f"v_pk_mul_f32 v[18:19], v[18:19], v[16:17] op_sel_hi:[1,0]")
        a(f"v_cvt_pk_bf16_f32 v{X+k}, v18, v19")
    a(f"s_add_u32 s{S_A+1}, s{S_A}, {WS_XN}")
    for i in range(9):
        a(f"buffer_store_dwordx4 {v4(X+4*i)}, v7, {WSR}, s{S_A+1} offen sc1")
        a(f"s_add_u32 s{S_A+1}, s{S_A+1}, 4096")
    a("s_waitcnt vmcnt(0)")
    a("s_barrier")
    sk = a.label("Lln")
    a(f"s_cmp_lg_u32 s{S_W}, 0\ns_cbranch_scc1 {sk}")
    flag_addr(a, S_A+3, FG_XN, S_SEG, 64)
    signal(a, S_A+3, stage=0)
    a(f"""{sk}:
    s_add_u32 s{S_SEG}, s{S_SEG}, {stride}
    s_branch {lp}
    {done}:
    s_waitcnt vmcnt(0)
    """)

def load_wT_frags(a, srd, row_stride, col_byte_sgpr, nrows, dst0, swz_rows=True, kmap="nat", lds0=0, ncolgran=16):
    nfr = nrows // 16
    ninstr = nrows // 4
    per_wave = ninstr // 4
    lp = a.label("Lwd")
    a(f"""
    v_and_b32 v1, 63, v0
    v_lshrrev_b32 v2, 4, v1            ; row in group (0..3)
    v_and_b32 v3, 15, v1               ; pos
    v_lshlrev_b32 v4, 2, v2
    v_xor_b32 v3, v3, v4               ; source granule = pos ^ (row<<2)
    v_lshlrev_b32 v3, 4, v3
    v_mul_u32_u24 v4, {row_stride}, v2
    v_add_u32 v3, v3, v4               ; per-lane source offset
    s_mul_i32 s{S_A+4}, s{S_W}, {per_wave}        ; first instr index
    s_lshl_b32 s{S_A+5}, s{S_A+4}, 10
    s_add_u32 s{S_A+5}, s{S_A+5}, {lds0}          ; LDS dst
    s_mul_i32 s{S_A+6}, s{S_A+4}, {4*row_stride}
    s_add_u32 s{S_A+6}, s{S_A+6}, s{col_byte_sgpr}
    s_mov_b32 s{S_A+7}, 0
    {lp}:
    s_mov_b32 m0, s{S_A+5}
    s_add_u32 s{S_A+5}, s{S_A+5}, 1024
    buffer_load_dwordx4 v3, {srd}, s{S_A+6} offen nt lds
    s_add_u32 s{S_A+6}, s{S_A+6}, {4*row_stride}
    s_add_u32 s{S_A+7}, s{S_A+7}, 1
    s_cmp_lt_u32 s{S_A+7}, {per_wave}
    s_cbranch_scc1 {lp}
    ; tr-read address: lane (gi=l>>4, r'=(l>>2)&3, c'=l&3): kg=gi>>1 ; col granule q = 4w + 2(gi&1) + (c'>>1)
    v_lshrrev_b32 v4, 4, v1            ; gi
    v_lshrrev_b32 v5, 2, v1
    v_and_b32 v5, 3, v5                ; r'
    v_and_b32 v6, 3, v1                ; c'
    v_lshrrev_b32 v7, 1, v4            ; kg
    v_and_b32 v8, 1, v4                ; gi&1
    v_lshlrev_b32 v8, 1, v8
    v_lshrrev_b32 v9, 1, v6
    s_lshl_b32 s{S_A+4}, s{S_W}, 2
    v_add3_u32 v8, v8, v9, s{S_A+4}    ; q
    v_lshlrev_b32 v9, 2, v5            ; f(d) = (d&3)<<2 = r'<<2  (row offsets below keep d&3 = r')
    v_xor_b32 v8, v8, v9
    v_lshlrev_b32 v8, 4, v8
    v_and_b32 v9, 1, v6
    v_lshlrev_b32 v9, 3, v9
    v_add_u32 v8, v8, v9               ; col part
    v_lshlrev_b32 v9, {3 if kmap=='nat' else 2}, v7     ; kg*8 (nat) or kg*4 (pc)
    v_add_u32 v9, v9, v5               ; + r'
    v_lshlrev_b32 v9, 8, v9
    v_add3_u32 v10, v8, v9, {0}
    v_add_u32 v10, {lds0}, v10
    s_waitcnt vmcnt(0)
    s_barrier
    """.replace("v_add3_u32 v10, v8, v9, 0", "v_add_u32 v10, v8, v9"))
    second = 4*256 if kmap == 'nat' else 8*256
    for t in range(nfr):
        off = (t % 8)*4096
        if t and t % 8 == 0: a("v_add_u32 v10, 32768, v10")
        a(f"ds_read_b64_tr_b16 {v2(dst0+4*t)}, v10 offset:{off}")
        a(f"ds_read_b64_tr_b16 {v2(dst0+4*t+2)}, v10 offset:{off+second}")
        if t % 4 == 3: a("s_waitcnt lgkmcnt(4)")
    a("s_waitcnt lgkmcnt(0)")
    a("s_barrier")

def dma_seg(a, s_goff, lds_base_sgpr):
    a(f"""s_mul_i32 s{S_A+8}, s{S_W}, 9216
    s_add_u32 s{S_A+9}, s{S_A+8}, s{lds_base_sgpr}
    s_add_u32 s{S_A+8}, s{S_A+8}, s{s_goff}""")
    for i in range(9):
        a(f"s_mov_b32 m0, s{S_A+9}")
        a(f"s_add_u32 s{S_A+9}, s{S_A+9}, 1024")
        a(f"buffer_load_dwordx4 v1, {WSR}, s{S_A+8} offen sc1 lds")
        a(f"s_add_u32 s{S_A+8}, s{S_A+8}, 1024")

def role_t1(a, L_fail):
    WF = 64; ACC = 16; RING = 32
    vform = a.label("Lt1v");
    a(f"""
    s_lshr_b32 s{S_B}, s{S_IDX}, 5            ; mat
    s_and_b32 s{S_B+1}, s{S_IDX}, 31          ; h
    s_lshl_b32 s{S_B+2}, s{S_B}, 3
    s_add_u32 s{S_B+2}, s{S_B+2}, {KA_WQ}
    s_load_dwordx2 s[{S_A}:{S_A+1}], s[0:1], s{S_B+2}
    s_waitcnt lgkmcnt(0)
    s_mov_b32 s{S_TMP}, s{S_A}
    s_mov_b32 s{S_TMP+1}, s{S_A+1}
    s_mov_b32 s{S_TMP+2}, {576*8192}
    s_mov_b32 s{S_TMP+3}, 0x20000
    s_lshl_b32 s{S_B+3}, s{S_B+1}, 8          ; h*256 bytes
    """)
    load_wT_frags(a, TMPR, 8192, S_B+3, 576, WF, kmap='nat')
    a(f"""
    s_lshl_b32 s{S_B+4}, s{S_B}, 24
    s_add_u32 s{S_B+4}, s{S_B+4}, {WS_QF}
    s_lshl_b32 s{S_B+5}, s{S_B+1}, 13
    s_add_u32 s{S_B+4}, s{S_B+4}, s{S_B+5}
    s_lshl_b32 s{S_B+5}, s{S_W}, 11
    s_add_u32 s{S_B+4}, s{S_B+4}, s{S_B+5}
    s_lshl_b32 s{S_B+6}, s{S_B+1}, 4
    s_lshl_b32 s{S_B+5}, s{S_B}, 2
    s_add_u32 s{S_B+6}, s{S_B+6}, s{S_B+5}
    s_add_u32 s{S_B+6}, s{S_B+6}, {FG_QKV}
    v_and_b32 v1, 63, v0
    v_lshlrev_b32 v1, 4, v1
    """)
    wait_init(a, L_fail)
    a(f"s_mov_b32 s{S_SEG}, 0\ns_mov_b32 s{S_B+7}, {FG_XN}")
    sk0 = a.label("Lt1")
    a(f"s_cmp_lg_u32 s{S_W}, 0\ns_cbranch_scc1 {sk0}")
    wait_flags(a, S_B+7, 0, 1, L_fail)
    a(f"s_add_u32 s{S_B+7}, s{S_B+7}, 64")
    wait_flags(a, S_B+7, 0, 1, L_fail)
    a(f"{sk0}:\ns_barrier")
    a(f"s_mov_b32 s{S_B+8}, {WS_XN}\ns_mov_b32 s{S_B+9}, 0")
    dma_seg(a, S_B+8, S_B+9)
    a("s_waitcnt vmcnt(0)")
    lp = a.label("Lt1"); nonext = a.label("Lt1"); st = a.label("Lt1"); nosig = a.label("Lt1")
    a(f"""{lp}:
    s_waitcnt vmcnt(2)
    s_barrier
    s_cmp_lg_u32 s{S_W}, 0
    s_cbranch_scc1 {nosig}
    s_cmp_lt_u32 s{S_SEG}, 2
    s_cbranch_scc1 {nosig}
    s_sub_u32 s{S_A+1}, s{S_SEG}, 2
    s_lshl_b32 s{S_A+1}, s{S_A+1}, 9
    s_add_u32 s{S_A+1}, s{S_A+1}, s{S_B+6}""")
    a(f"s_sub_u32 s{S_SEG}, s{S_SEG}, 2")
    signal(a, S_A+1, stage=2)
    a(f"s_add_u32 s{S_SEG}, s{S_SEG}, 2")
    a(f"""{nosig}:
    s_cmp_ge_u32 s{S_SEG}, 63
    s_cbranch_scc1 {nonext}
    s_add_u32 s{S_B+8}, s{S_B+8}, {SEGB}
    s_xor_b32 s{S_B+10}, s{S_B+9}, {SEGB}""")
    dma_seg(a, S_B+8, S_B+10)
    a(f"""{nonext}:
    s_add_u32 s{S_B+11}, s{S_SEG}, 2
    s_min_u32 s{S_B+11}, s{S_B+11}, 63
    s_lshl_b32 s{S_B+11}, s{S_B+11}, 6
    s_add_u32 s{S_B+11}, s{S_B+11}, {FG_XN}
    s_mov_b64 exec, 1
    buffer_load_dword v3, off, {WSR}, s{S_B+11} sc1
    s_mov_b64 exec, -1
    v_add_u32 v2, s{S_B+9}, v1""")
    for k in range(8): a(f"ds_read_b128 {v4(RING+4*k)}, v2 offset:{k*1024}")
    a(f"s_cmp_eq_u32 s{S_B}, 2\ns_cbranch_scc1 {vform}")
    def body(vmode):
        for t in range(36):
            sl = RING + 4*(t % 8)
            out = 7 if t == 0 else min(6, 35 - t)
            a(f"s_waitcnt lgkmcnt({out})")
            c = "0" if t == 0 else f"v[{ACC}:{ACC+15}]"
            if vmode: a(f"v_mfma_f32_32x32x16_bf16 v[{ACC}:{ACC+15}], {v4(sl)}, {v4(WF+4*t)}, {c}")
            else:     a(f"v_mfma_f32_32x32x16_bf16 v[{ACC}:{ACC+15}], {v4(WF+4*t)}, {v4(sl)}, {c}")
            if t >= 1 and t + 7 < 36:
                a(f"ds_read_b128 {v4(RING+4*((t+7) % 8))}, v2 offset:{(t+7)*1024}")
    body(False)
    a("s_nop 7\ns_nop 3")
    for u in range(2):
        for k in range(4):
            a(f"v_cvt_pk_bf16_f32 v{RING+4*u+k}, v{ACC+8*u+2*k}, v{ACC+8*u+2*k+1}")
    a(f"s_branch {st}")
    a(f"{vform}:")
    body(True)
    a("s_nop 7\ns_nop 3")
    for v in range(2):
        a(f"v_cvt_pk_bf16_f32 v{RING+4*v}, v{ACC+4*v}, v{ACC+4*v+1}")
        a(f"v_cvt_pk_bf16_f32 v{RING+4*v+1}, v{ACC+4*v+2}, v{ACC+4*v+3}")
        a(f"v_cvt_pk_bf16_f32 v{RING+4*v+2}, v{ACC+4*v+8}, v{ACC+4*v+9}")
        a(f"v_cvt_pk_bf16_f32 v{RING+4*v+3}, v{ACC+4*v+10}, v{ACC+4*v+11}")
    a(f"""{st}:
    s_mul_i32 s{S_A}, s{S_SEG}, {32*8192}
    s_add_u32 s{S_A}, s{S_A}, s{S_B+4}
    buffer_store_dwordx4 {v4(RING)}, v1, {WSR}, s{S_A} offen sc1
    buffer_store_dwordx4 {v4(RING+4)}, v1, {WSR}, s{S_A} offen offset:1024 sc1
    """)
    okp = a.label("Lt1")
    a(f"""s_cmp_lg_u32 s{S_W}, 0
    s_cbranch_scc1 {okp}
    s_waitcnt vmcnt(2)
    v_readfirstlane_b32 s{S_A+1}, v3
    s_cmp_lg_u32 s{S_A+1}, 0
    s_cbranch_scc1 {okp}""")
    wait_flags(a, S_B+11, 0, 1, L_fail)
    a(f"""{okp}:
    s_xor_b32 s{S_B+9}, s{S_B+9}, {SEGB}
    s_add_u32 s{S_SEG}, s{S_SEG}, 1
    s_cmp_lt_u32 s{S_SEG}, 64
    s_cbranch_scc1 {lp}
    s_waitcnt vmcnt(0)
    s_barrier
    """)
    fin = a.label("Lt1")
    a(f"s_cmp_lg_u32 s{S_W}, 0\ns_cbranch_scc1 {fin}")
    for sg in (62, 63):
        a(f"s_add_u32 s{S_A+1}, s{S_B+6}, {sg*512}\ns_mov_b32 s{S_SEG}, {sg}")
        signal(a, S_A+1, stage=2)
    a(f"{fin}:\ns_waitcnt vmcnt(0)")

def load_tiles_inplace(a, srd, row_stride, s_base, ntile_outer, ntile_inner, outer_step, inner_steps, lds0):
    lp = a.label("Lti"); done = a.label("Lti"); lp2 = a.label("Lti"); d2 = a.label("Lti")
    a(f"""
    v_and_b32 v1, 63, v0
    v_lshrrev_b32 v2, 2, v1            ; row (0..15)
    v_and_b32 v3, 3, v1                ; granule (0..3)
    v_mul_u32_u24 v2, {row_stride}, v2
    v_lshlrev_b32 v3, 4, v3
    v_add_u32 v3, v2, v3
    s_mov_b32 s{S_A+4}, s{S_W}
    {lp}:
    s_cmp_ge_u32 s{S_A+4}, {ntile_outer}
    s_cbranch_scc1 {done}
    s_mul_i32 s{S_A+5}, s{S_A+4}, {ntile_inner*1024}
    s_add_u32 s{S_A+5}, s{S_A+5}, {lds0}
    s_mul_i32 s{S_A+6}, s{S_A+4}, {outer_step}
    s_add_u32 s{S_A+6}, s{S_A+6}, s{s_base}
    """)
    for i in range(ntile_inner):
        a(f"s_mov_b32 m0, s{S_A+5}")
        a(f"s_add_u32 s{S_A+5}, s{S_A+5}, 1024")
        a(f"s_add_u32 s{S_A+7}, s{S_A+6}, {inner_steps[i]}")
        a(f"buffer_load_dwordx4 v3, {srd}, s{S_A+7} offen nt lds")
    a(f"""s_add_u32 s{S_A+4}, s{S_A+4}, 4
    s_branch {lp}
    {done}:
    v_lshrrev_b32 v4, 4, v1
    v_lshrrev_b32 v5, 2, v1
    v_and_b32 v5, 3, v5
    v_and_b32 v6, 3, v1
    v_lshrrev_b32 v7, 1, v4
    v_lshlrev_b32 v7, 2, v7
    v_add_u32 v7, v7, v5               ; row
    v_lshlrev_b32 v7, 6, v7
    v_and_b32 v8, 1, v4
    v_lshlrev_b32 v8, 5, v8
    v_lshlrev_b32 v6, 3, v6            ; c'*8
    v_add3_u32 v7, v7, v8, v6
    v_lshlrev_b32 v8, 4, v1            ; lane*16
    s_waitcnt vmcnt(0)
    s_mov_b32 s{S_A+4}, s{S_W}
    {lp2}:
    s_cmp_ge_u32 s{S_A+4}, {ntile_outer}
    s_cbranch_scc1 {d2}
    s_mul_i32 s{S_A+5}, s{S_A+4}, {ntile_inner*1024}
    s_add_u32 s{S_A+5}, s{S_A+5}, {lds0}
    v_add_u32 v9, s{S_A+5}, v7
    v_add_u32 v10, s{S_A+5}, v8
    """)
    for i in range(ntile_inner):
        r = 16 + 4*(i % 8)
        a(f"ds_read_b64_tr_b16 {v2(r)}, v9 offset:{i*1024}")
        a(f"ds_read_b64_tr_b16 {v2(r+2)}, v9 offset:{i*1024+512}")
        if i % 8 == 7 or i == ntile_inner-1:
            a("s_waitcnt lgkmcnt(0)")
            for k in range(i - (i % 8), i+1):
                a(f"ds_write_b128 v10, {v4(16+4*(k % 8))} offset:{k*1024}")
            a("s_waitcnt lgkmcnt(0)")
    a(f"""s_add_u32 s{S_A+4}, s{S_A+4}, 4
    s_branch {lp2}
    {d2}:
    s_barrier
    """)

def role_alpha(a, L_fail):
    h = S_IDX
    make_srd(a, S_TMP, KA_WO, 4096*1152)
    a(f"s_mul_i32 s{S_B}, s{h}, {128*1152}")
    load_tiles_inplace(a, TMPR, 1152, S_B, 18, 8, 64, [(16*k)*1152 for k in range(8)], 0)
    QF = 16
    KR = 48
    SX = 80
    SM = 96
    KM = 112
    P0 = 144; P1 = 148; PM = 152
    OB = 156
    OA = 188
    VMF = 204
    ACC = [220, 236]
    RING = 0
    a(f"""
    v_and_b32 v1, 63, v0
    v_lshlrev_b32 v2, 4, v1                 ; lane*16
    v_and_b32 v3, 31, v1
    v_lshrrev_b32 v4, 5, v1                 ; hi
    v_and_b32 v5, 7, v3
    v_lshlrev_b32 v6, 4, v4
    v_add3_u32 v5, v5, v6, 8
    v_lshlrev_b32 v5, 4, v5
    v_and_b32 v6, 15, v3
    v_lshlrev_b32 v7, 5, v4
    v_add_u32 v6, v6, v7
    v_lshlrev_b32 v6, 4, v6
    v_lshrrev_b32 v7, 4, v3
    v_lshlrev_b32 v7, 3, v7
    v_add_u32 v6, v6, v7
    v_lshrrev_b32 v7, 2, v3
    v_mul_u32_u24 v7, 4608, v7
    v_lshlrev_b32 v8, 6, v4
    v_and_b32 v9, 3, v3
    v_lshlrev_b32 v9, 4, v9
    v_add3_u32 v7, v7, v8, v9               ; v7
    v_lshlrev_b32 v8, 2, v4
    v_sub_u32 v8, v3, v8
    s_mov_b32 s{S_B+1}, {f2h(0.08838834764831845*1.4426950408889634):#x}
    s_mov_b32 s{S_B+2}, 0xff800000          ; -inf
    """)
    wait_init(a, L_fail)
    lp = a.label("Lal"); done = a.label("Lal")
    a(f"""s_mov_b32 s{S_SEG}, s{S_W}
    {lp}:
    s_cmp_ge_u32 s{S_SEG}, 64
    s_cbranch_scc1 {done}
    s_lshl_b32 s{S_B+3}, s{S_SEG}, 5
    s_add_u32 s{S_B+3}, s{S_B+3}, s{h}       ; seg*32+h
    s_lshl_b32 s{S_B+4}, s{S_B+3}, 13        ; *8192
    s_lshl_b32 s{S_B+5}, s{S_B+3}, 12        ; *4096
    """)
    a(f"s_lshl_b32 s{S_B+14}, s{S_B+3}, 4")
    a(f"s_add_u32 s{S_B+6}, s{S_B+14}, {FG_QKV}"); wait_flags(a, S_B+6, 0, 3, L_fail, vt=14)
    a(f"s_add_u32 s{S_B+7}, s{S_B+4}, {WS_QF}\ns_add_u32 s{S_B+8}, s{S_B+7}, 4096")
    a(f"s_add_u32 s{S_B+9}, s{S_B+4}, {WS_KF}\ns_add_u32 s{S_B+10}, s{S_B+9}, 4096")
    for k in range(8):
        a(f"buffer_load_dwordx4 {v4(QF+4*k)}, v2, {WSR}, s{S_B+7+(k//4)} offen offset:{(k%4)*1024} sc1")
    for k in range(8):
        a(f"buffer_load_dwordx4 {v4(KR+4*k)}, v2, {WSR}, s{S_B+9+(k//4)} offen offset:{(k%4)*1024} sc1")
    for k in range(8):
        a(f"s_waitcnt vmcnt({7-k})" if False else "")
    a("s_waitcnt vmcnt(0)")
    for k in range(8):
        a(f"v_mfma_f32_32x32x16_bf16 v[{SX}:{SX+15}], {v4(KR+4*k)}, {v4(QF+4*k)}, " + ("0" if k == 0 else f"v[{SX}:{SX+15}]"))
    a(f"s_add_u32 s{S_B+9}, s{S_B+4}, {WS_VF}\ns_add_u32 s{S_B+10}, s{S_B+9}, 4096")
    a("s_nop 7")
    for k in range(8):
        a(f"buffer_load_dwordx4 {v4(KR+4*k)}, v2, {WSR}, s{S_B+9+(k//4)} offen offset:{(k%4)*1024} sc1")
    a(f"s_add_u32 s{S_B+6}, s{S_B+14}, {FG_M}"); wait_flags(a, S_B+6, 0, 1, L_fail, vt=14)
    a(f"s_add_u32 s{S_B+11}, s{S_B+5}, {WS_KM}\ns_add_u32 s{S_B+12}, s{S_B+5}, {WS_VM}")
    for k in range(8):
        a(f"buffer_load_dwordx4 {v4(KM+4*k)}, v5, {WSR}, s{S_B+11} offen offset:{(k>>1)*1024+(k&1)*512} sc1")
    for w2 in range(4):
        a(f"buffer_load_dword v{VMF+4*w2}, v6, {WSR}, s{S_B+12} offen offset:{w2*1024} sc1")
        a(f"buffer_load_dword v{VMF+4*w2+1}, v6, {WSR}, s{S_B+12} offen offset:{w2*1024+256} sc1")
        a(f"v_mov_b32 v{VMF+4*w2+2}, 0\nv_mov_b32 v{VMF+4*w2+3}, 0")
    a("s_waitcnt vmcnt(8)")
    for k in range(8):
        a(f"v_mfma_f32_32x32x16_bf16 v[{SM}:{SM+15}], {v4(KM+4*k)}, {v4(QF+4*k)}, " + ("0" if k == 0 else f"v[{SM}:{SM+15}]"))
    for r in range(16):
        kk = 8*(r >> 2) + (r & 3)
        a(f"v_cmp_le_i32 vcc, {kk}, v8")
        a("s_nop 1" if r == 0 else "s_nop 0")
        a(f"v_mov_b32 v10, s{S_B+2}")
        a(f"v_cndmask_b32 v{SX+r}, v10, v{SX+r}, vcc")
    a("s_nop 7\ns_nop 3")
    a(f"v_max3_f32 v10, v{SX}, v{SX+1}, v{SX+2}")
    for r in range(3, 15, 2):
        a(f"v_max3_f32 v10, v10, v{SX+r}, v{SX+r+1}")
    a(f"v_max3_f32 v10, v10, v{SX+15}, v{SM}")
    a(f"v_max3_f32 v10, v10, v{SM+1}, v{SM+2}")
    a(f"v_max_f32 v10, v10, v{SM+3}")
    a("v_mov_b32 v11, v10\ns_nop 1\nv_permlane32_swap_b32 v10, v11\nv_max_f32 v10, v10, v11")
    a(f"v_mul_f32 v10, s{S_B+1}, v10")
    for r in list(range(SX, SX+16)) + list(range(SM, SM+4)):
        a(f"v_fma_f32 v{r}, v{r}, s{S_B+1}, -v10")
        a(f"v_exp_f32 v{r}, v{r}")
    a("s_nop 0")
    a(f"v_add_f32 v11, v{SX}, v{SX+1}")
    for r in list(range(SX+2, SX+16)) + list(range(SM, SM+4)):
        a(f"v_add_f32 v11, v11, v{r}")
    a("v_mov_b32 v12, v11\ns_nop 1\nv_permlane32_swap_b32 v11, v12\nv_add_f32 v11, v11, v12")
    a("v_rcp_f32 v11, v11\ns_nop 0")
    for r in list(range(SX, SX+16)) + list(range(SM, SM+4)):
        a(f"v_mul_f32 v{r}, v{r}, v11")
    for v, P in ((0, P0), (1, P1)):
        a(f"v_cvt_pk_bf16_f32 v{P}, v{SX+4*v}, v{SX+4*v+1}")
        a(f"v_cvt_pk_bf16_f32 v{P+1}, v{SX+4*v+2}, v{SX+4*v+3}")
        a(f"v_cvt_pk_bf16_f32 v{P+2}, v{SX+4*v+8}, v{SX+4*v+9}")
        a(f"v_cvt_pk_bf16_f32 v{P+3}, v{SX+4*v+10}, v{SX+4*v+11}")
    a(f"v_cvt_pk_bf16_f32 v{PM}, v{SM}, v{SM+1}")
    a(f"v_cvt_pk_bf16_f32 v{PM+1}, v{SM+2}, v{SM+3}")
    a(f"v_mov_b32 v{PM+2}, 0\nv_mov_b32 v{PM+3}, 0")
    a("s_waitcnt vmcnt(0)")
    a("s_nop 1")
    for w2 in range(4):
        a(f"v_mfma_f32_32x32x16_bf16 v[{OA}:{OA+15}], {v4(KR+8*w2)}, {v4(P0)}, 0")
        a(f"v_mfma_f32_32x32x16_bf16 v[{OA}:{OA+15}], {v4(KR+8*w2+4)}, {v4(P1)}, v[{OA}:{OA+15}]")
        a(f"v_mfma_f32_32x32x16_bf16 v[{OA}:{OA+15}], {v4(VMF+4*w2)}, {v4(PM)}, v[{OA}:{OA+15}]")
        a("s_nop 7\ns_nop 3")
        for u in range(2):
            for k in range(4):
                a(f"v_cvt_pk_bf16_f32 v{OB+8*w2+4*u+k}, v{OA+8*u+2*k}, v{OA+8*u+2*k+1}")
        a("s_nop 3")
    a(f"s_mul_i32 s{S_B+13}, s{S_B+3}, {SEGB}\ns_add_u32 s{S_B+13}, s{S_B+13}, {WS_PA}")
    a("v_mov_b32 v13, v2")
    n = 144
    for i in range(7):
        a(f"ds_read_b128 a[{4*(i%8)}:{4*(i%8)+3}], v13 offset:{i*1024}")
    base = 0
    for i in range(n):
        ct, ks = i // 8, i % 8
        acc = ACC[ct % 2]
        a(f"s_waitcnt lgkmcnt({min(6, n-1-i)})")
        a(f"v_mfma_f32_32x32x16_bf16 v[{acc}:{acc+15}], a[{4*(i%8)}:{4*(i%8)+3}], {v4(OB+4*ks)}, " + ("0" if ks == 0 else f"v[{acc}:{acc+15}]"))
        j = i + 7
        if j < n:
            off = j*1024 - base
            if off > 65535 - 1024:
                a(f"v_add_u32 v13, 57344, v13"); base += 57344; off = j*1024 - base
            a(f"ds_read_b128 a[{4*(j%8)}:{4*(j%8)+3}], v13 offset:{off}")
        if ks == 3 and ct >= 1 or i == n-1:
            pcs = [ct-1] if i != n-1 else [ct]
            if i == n-1: a("s_nop 7\ns_nop 3")
            for c2 in pcs:
                ac = ACC[c2 % 2]
                for u in range(2):
                    for k in range(4):
                        a(f"v_cvt_pk_bf16_f32 v{QF+4*u+k}, v{ac+8*u+2*k}, v{ac+8*u+2*k+1}")
                for u in range(2):
                    a(f"buffer_store_dwordx4 {v4(QF+4*u)}, v7, {WSR}, s{S_B+13} offen offset:{u*128} sc1")
                a(f"s_add_u32 s{S_B+13}, s{S_B+13}, 256")
                a("s_nop 1")
    a("s_waitcnt vmcnt(0)")
    flag_addr(a, S_B+6, FG_PA, S_SEG, 128, h, 4)
    signal(a, S_B+6, vt=14, stage=4)
    a(f"""s_add_u32 s{S_SEG}, s{S_SEG}, 4
    s_branch {lp}
    {done}:
    s_waitcnt vmcnt(0)
    """)

def role_reduce(a, L_fail, final):
    NP = 36 if final else 32
    PSRC = WS_PB if final else WS_PA
    EXTRA = WS_H if final else WS_XP
    ngrp = NP // 4
    if final: make_srd(a, S_IO, KA_OUT, 2048*1152)
    SEL = 16
    D = 24
    LD = 48
    a(f"""
    s_and_b32 s{S_B}, s{S_IDX}, 7             ; tg
    s_lshr_b32 s{S_B+1}, s{S_IDX}, 3          ; parity
    v_and_b32 v1, 63, v0
    v_and_b32 v2, 15, v1                      ; n / m
    v_lshrrev_b32 v3, 4, v1                   ; g
    v_mul_u32_u24 v4, {SEGB}, v3
    v_lshlrev_b32 v5, 4, v2
    s_mul_i32 s{S_B+2}, s{S_B}, 4608
    v_add3_u32 v4, v4, v5, s{S_B+2}           ; v4
    v_add_u32 v6, s{S_B+2}, v5
    v_lshrrev_b32 v7, 1, v2
    v_and_b32 v8, 1, v2
    v_mov_b32 v9, 0x3f80
    v_mov_b32 v10, 0x3f800000
    v_cmp_eq_u32 vcc, 1, v8
    s_nop 1
    v_cndmask_b32 v9, v9, v10, vcc
    """)
    for j in range(4):
        a(f"v_cmp_eq_u32 vcc, {j}, v7\ns_nop 1\nv_cndmask_b32 v{SEL+j}, 0, v9, vcc")
    a(f"""
    v_and_b32 v7, 3, v2                       ; tt
    v_bfe_u32 v8, v2, 2, 1                    ; hi
    v_lshrrev_b32 v9, 3, v2                   ; u
    ; H block offset: tg*4608 + (16bg + n)*16 + g''*8
    v_lshlrev_b32 v10, 3, v3
    v_add_u32 v11, v6, v10                    ; v11 = H store offset (bg adds 256)
    ; HN offset: p*1024 + hi*512 + token*16 + g''*8 ; token = 4tg+tt ; (bg adds 2048)
    v_lshlrev_b32 v12, 10, v9
    v_lshlrev_b32 v13, 9, v8
    v_add3_u32 v12, v12, v13, v10
    v_lshlrev_b32 v13, 4, v7
    s_lshl_b32 s{S_B+3}, s{S_B}, 6
    v_add3_u32 v12, v12, v13, s{S_B+3}        ; v12
    ; out offset: token*1152 + (32bg + 16u + 8g'' + 4hi)*2 ; (bg adds 64)
    v_lshlrev_b32 v13, 2, 0
    s_lshl_b32 s{S_B+3}, s{S_B}, 2
    v_add_u32 v13, s{S_B+3}, v7               ; token in segment
    v_mul_u32_u24 v13, 1152, v13
    v_lshlrev_b32 v14, 5, v9
    v_lshlrev_b32 v15, 4, v3
    v_add3_u32 v13, v13, v14, v15
    v_lshlrev_b32 v14, 3, v8
    v_add_u32 v13, v13, v14                   ; v13
    """.replace("v_lshlrev_b32 v13, 2, 0\n", ""))
    wait_init(a, L_fail)
    lp = a.label("Lrd"); done = a.label("Lrd")
    a(f"""s_mov_b32 s{S_SEG}, s{S_B+1}
    {lp}:
    s_cmp_ge_u32 s{S_SEG}, 64
    s_cbranch_scc1 {done}""")
    skw = a.label("Lrd")
    a(f"s_cmp_lg_u32 s{S_W}, 0\ns_cbranch_scc1 {skw}")
    if final:
        flag_addr(a, S_B+4, FG_PB, S_SEG, 256); wait_flags(a, S_B+4, 0, 36, L_fail)
        flag_addr(a, S_B+4, FG_H, S_SEG, 128); wait_flags(a, S_B+4, 0, 8, L_fail)
    else:
        flag_addr(a, S_B+4, FG_PA, S_SEG, 128); wait_flags(a, S_B+4, 0, 32, L_fail)
        flag_addr(a, S_B+4, FG_XN, S_SEG, 64); wait_flags(a, S_B+4, 0, 1, L_fail)
    a(f"{skw}:\ns_barrier")
    a(f"""s_mul_i32 s{S_B+5}, s{S_SEG}, {NP*SEGB}
    s_add_u32 s{S_B+5}, s{S_B+5}, {PSRC}
    s_mul_i32 s{S_B+6}, s{S_SEG}, {SEGB}
    s_add_u32 s{S_B+7}, s{S_B+6}, {EXTRA}
    s_lshl_b32 s{S_B+8}, s{S_W}, 8
    s_add_u32 s{S_B+5}, s{S_B+5}, s{S_B+8}
    s_add_u32 s{S_B+7}, s{S_B+7}, s{S_B+8}
    """)
    def issue(i, buf):
        r = buf
        for k in range(4): a(f"v_mov_b32 v{r+k}, 0")
        a("s_mov_b64 exec, 0xffff")
        a(f"s_add_u32 s{S_B+9}, s{S_B+7}, {i*1024}")
        a(f"buffer_load_dwordx4 {v4(r)}, v6, {WSR}, s{S_B+9} offen sc1")
        a("s_mov_b64 exec, -1")
        a(f"s_add_u32 s{S_B+9}, s{S_B+5}, {i*1024}")
        for q in range(ngrp):
            a(f"buffer_load_dwordx4 {v4(r+4+4*q)}, v4, {WSR}, s{S_B+9} offen sc1")
            if q < ngrp-1: a(f"s_add_u32 s{S_B+9}, s{S_B+9}, {4*SEGB}")
    def consume(i, buf, pending_after):
        nl = ngrp + 1
        for q in range(nl):
            a(f"s_waitcnt vmcnt({min(63, nl-1-q + pending_after)})")
            a(f"v_mfma_f32_16x16x32_bf16 {v4(D+4*i)}, {v4(SEL)}, {v4(buf+4*q)}, " + ("0" if q == 0 else v4(D+4*i)))
    bufs = [LD, LD+44]
    nl = ngrp + 1
    skip5 = a.label("Lrd")
    issue(0, bufs[0]); issue(1, bufs[1])
    consume(0, bufs[0], nl); issue(2, bufs[0])
    consume(1, bufs[1], nl); issue(3, bufs[1])
    consume(2, bufs[0], nl)
    l5 = a.label("Lrd")
    a(f"s_cmp_lt_u32 s{S_W}, 2\ns_cbranch_scc0 {skip5}")
    issue(4, bufs[0]); consume(3, bufs[1], nl); consume(4, bufs[0], 0)
    a(f"s_branch {l5}\n{skip5}:")
    consume(3, bufs[1], 0)
    for k in range(4): a(f"v_mov_b32 v{D+16+k}, 0")
    a(f"{l5}:")
    a("s_nop 7")
    for i in range(5):
        a(f"v_cvt_pk_bf16_f32 v{LD+2*i}, v{D+4*i}, v{D+4*i+1}")
        a(f"v_cvt_pk_bf16_f32 v{LD+2*i+1}, v{D+4*i+2}, v{D+4*i+3}")
    if final:
        a(f"s_mul_i32 s{S_B+10}, s{S_SEG}, {32*1152}")
        a(f"s_lshl_b32 s{S_B+11}, s{S_W}, 6\ns_add_u32 s{S_B+10}, s{S_B+10}, s{S_B+11}")
        a("s_mov_b32 exec_hi, 0")
        for i in range(4):
            a(f"buffer_store_dwordx2 {v2(LD+2*i)}, v13, {IOR}, s{S_B+10} offen offset:{i*256}")
        sk = a.label("Lrd")
        a(f"s_cmp_lt_u32 s{S_W}, 2\ns_cbranch_scc0 {sk}")
        a(f"buffer_store_dwordx2 {v2(LD+8)}, v13, {IOR}, s{S_B+10} offen offset:{4*256}")
        a(f"{sk}:\ns_mov_b64 exec, -1")
        if REPORT[0]:
            a("s_waitcnt vmcnt(0)"); stamp_max(a, 3, 250)
    else:
        a(f"s_add_u32 s{S_B+10}, s{S_B+6}, {WS_H}\ns_add_u32 s{S_B+10}, s{S_B+10}, s{S_B+8}")
        a("s_mov_b32 exec_hi, 0")
        for i in range(4):
            a(f"buffer_store_dwordx2 {v2(LD+2*i)}, v11, {WSR}, s{S_B+10} offen offset:{i*1024} sc1")
        sk = a.label("Lrd")
        a(f"s_cmp_lt_u32 s{S_W}, 2\ns_cbranch_scc0 {sk}")
        a(f"s_add_u32 s{S_B+11}, s{S_B+10}, 4096")
        a(f"buffer_store_dwordx2 {v2(LD+8)}, v11, {WSR}, s{S_B+11} offen sc1")
        a(f"{sk}:\ns_mov_b64 exec, -1")
        for i in range(5):
            for k in range(2):
                a(f"v_lshlrev_b32 v{D+4*i+2*k}, 16, v{LD+2*i+k}")
                a(f"v_and_b32 v{D+4*i+2*k+1}, 0xffff0000, v{LD+2*i+k}")
        def allsum(r):
            a("s_nop 1")
            a(f"v_add_f32_dpp v{r}, v{r}, v{r} row_ror:4 row_mask:0xf bank_mask:0xf")
            a("s_nop 1")
            a(f"v_add_f32_dpp v{r}, v{r}, v{r} row_ror:8 row_mask:0xf bank_mask:0xf")
            a(f"v_mov_b32 v{r+1}, v{r}\ns_nop 1\nv_permlane16_swap_b32 v{r}, v{r+1}\nv_add_f32 v{r}, v{r}, v{r+1}")
        a(f"v_and_b32 v20, 3, v1\nv_lshlrev_b32 v20, 2, v20\ns_lshl_b32 s{S_B+11}, s{S_W}, 4\nv_add_u32 v21, s{S_B+11}, v20")
        a(f"v_add_f32 v22, v{D}, v{D+1}")
        for k in range(2, 20): a(f"v_add_f32 v22, v22, v{D+k}")
        allsum(22)
        a("s_mov_b64 exec, 0xf\nds_write_b32 v21, v22\ns_mov_b64 exec, -1\ns_waitcnt lgkmcnt(0)\ns_barrier")
        for w2 in range(4): a(f"ds_read_b32 v{44+w2}, v20 offset:{w2*16}")
        a("s_waitcnt lgkmcnt(0)\nv_add_f32 v44, v44, v45\nv_add_f32 v46, v46, v47\nv_add_f32 v44, v44, v46")
        a(f"v_mul_f32 v44, {f2h(1.0/576):#x}, v44")
        a("v_mov_b32 v22, 0")
        for k in range(16):
            a(f"v_sub_f32 v23, v{D+k}, v44\nv_fmac_f32 v22, v23, v23")
        sk2 = a.label("Lrd")
        a(f"s_cmp_lt_u32 s{S_W}, 2\ns_cbranch_scc0 {sk2}")
        for k in range(16, 20):
            a(f"v_sub_f32 v23, v{D+k}, v44\nv_fmac_f32 v22, v23, v23")
        a(f"{sk2}:")
        allsum(22)
        a("s_mov_b64 exec, 0xf\nds_write_b32 v21, v22 offset:64\ns_mov_b64 exec, -1\ns_waitcnt lgkmcnt(0)\ns_barrier")
        for w2 in range(4): a(f"ds_read_b32 v{45+w2}, v20 offset:{64+w2*16}")
        a("s_waitcnt lgkmcnt(0)\nv_add_f32 v45, v45, v46\nv_add_f32 v47, v47, v48\nv_add_f32 v45, v45, v47")
        a(f"v_mul_f32 v45, {f2h(1.0/576):#x}, v45")
        round_bf16(a, 45, 45, 46)
        a(f"v_add_f32 v45, {f2h(1e-5):#x}, v45")
        round_bf16(a, 45, 45, 46)
        a("v_sqrt_f32 v45, v45\ns_nop 0")
        round_bf16(a, 45, 45, 46)
        a("v_rcp_f32 v45, v45")
        round_bf16(a, 44, 44, 46)
        for i in range(5):
            for k in range(2):
                r = D+4*i+2*k
                a(f"v_sub_f32 v46, v{r}, v44\nv_sub_f32 v47, v{r+1}, v44")
                a("v_cvt_pk_bf16_f32 v46, v46, v47")
                a("v_and_b32 v47, 0xffff0000, v46\nv_lshlrev_b32 v46, 16, v46")
                a("v_mul_f32 v46, v46, v45\nv_mul_f32 v47, v47, v45")
                a(f"v_cvt_pk_bf16_f32 v{LD+16+2*i+k}, v46, v47")
        a(f"s_add_u32 s{S_B+10}, s{S_B+6}, {WS_HN}\ns_lshl_b32 s{S_B+11}, s{S_W}, 11\ns_add_u32 s{S_B+10}, s{S_B+10}, s{S_B+11}")
        a("s_mov_b32 exec_hi, 0")
        for i in range(4):
            a(f"buffer_store_dwordx2 {v2(LD+16+2*i)}, v12, {WSR}, s{S_B+10} offen sc1")
            a(f"s_add_u32 s{S_B+10}, s{S_B+10}, 8192")
        sk = a.label("Lrd")
        a(f"s_cmp_lt_u32 s{S_W}, 2\ns_cbranch_scc0 {sk}")
        a(f"buffer_store_dwordx2 {v2(LD+16+8)}, v12, {WSR}, s{S_B+10} offen sc1")
        a(f"{sk}:\ns_mov_b64 exec, -1")
        a("s_waitcnt vmcnt(0)\ns_barrier")
        sk = a.label("Lrd")
        a(f"s_cmp_lg_u32 s{S_W}, 0\ns_cbranch_scc1 {sk}")
        flag_addr(a, S_B+4, FG_H, S_SEG, 128, S_B, 4)
        signal(a, S_B+4, stage=5)
        a(f"{sk}:")
    a(f"""s_add_u32 s{S_SEG}, s{S_SEG}, 2
    s_branch {lp}
    {done}:
    s_waitcnt vmcnt(0)
    """)

def role_ffn(a, L_fail):
    W1 = 64
    ACC1 = 16
    RING = 32
    HID = 208
    make_srd(a, S_TMP, KA_W1, 576*9216)
    a(f"s_lshl_b32 s{S_B}, s{S_IDX}, 8")
    load_wT_frags(a, TMPR, 9216, S_B, 576, W1, kmap='pc')
    make_srd(a, S_TMP, KA_W2, 4608*1152)
    a(f"s_mul_i32 s{S_B}, s{S_IDX}, {128*1152}")
    load_tiles_inplace(a, TMPR, 1152, S_B, 18, 8, 64, [(16*k)*1152 for k in range(8)], 0)
    a(f"""v_and_b32 v1, 63, v0
    v_lshlrev_b32 v1, 4, v1
    s_lshl_b32 s{S_B+1}, s{S_W}, 13
    v_add_u32 v2, s{S_B+1}, v1""")
    sk = a.label("Lff")
    for i in range(5):
        if i == 4: a(f"s_cmp_lt_u32 s{S_W}, 2\ns_cbranch_scc0 {sk}")
        for ks in range(8):
            a(f"ds_read_b128 a[{(i*8+ks)*4}:{(i*8+ks)*4+3}], v2 offset:{ks*1024}")
        a("s_waitcnt lgkmcnt(0)")
        a("v_add_u32 v2, 32768, v2")
    a(f"{sk}:\ns_barrier")
    XCH = 73728
    a(f"""
    v_and_b32 v3, 63, v0
    v_and_b32 v4, 31, v3                    ; token n
    v_lshrrev_b32 v5, 5, v3                 ; hi
    v_lshrrev_b32 v7, 2, v4
    v_mul_u32_u24 v7, 4608, v7
    v_lshlrev_b32 v8, 6, v5
    v_and_b32 v9, 3, v4
    v_lshlrev_b32 v9, 4, v9
    v_add3_u32 v7, v7, v8, v9
    v_add_u32 v8, {XCH}, v1
    s_lshl_b32 s{S_B+1}, s{S_W}, 11
    v_add_u32 v9, s{S_B+1}, v8
    """)
    DEC = XCH + 8192
    S_PEND = S_B+11
    wait_init(a, L_fail)
    a(f"s_mov_b32 s{S_SEG}, 0\ns_mov_b32 s{S_B+7}, {FG_H}\ns_mov_b32 s{S_PEND}, 0")
    wg_wait_flags(a, S_B+7, 0, 8, L_fail)
    a(f"s_mov_b32 s{S_B+8}, {WS_HN}\ns_mov_b32 s{S_B+9}, 0")
    dma_seg(a, S_B+8, S_B+9)
    a("s_waitcnt vmcnt(0)")
    lp = a.label("Lff")
    a(f"""{lp}:
    s_waitcnt vmcnt(8)
    s_barrier
    s_add_u32 s{S_B+12}, s{S_B+7}, 128
    s_mov_b64 exec, 0xff
    v_lshrrev_b32 v10, 2, v1
    buffer_load_dword v11, v10, {WSR}, s{S_B+12} offen sc1
    s_mov_b64 exec, -1
    v_add_u32 v2, s{S_B+9}, v1""")
    for k in range(8): a(f"ds_read_b128 {v4(RING+4*k)}, v2 offset:{k*1024}")
    for t in range(36):
        sl = RING + 4*(t % 8)
        a(f"s_waitcnt lgkmcnt({7 if t == 0 else min(6, 35 - t)})")
        a(f"v_mfma_f32_32x32x16_bf16 v[{ACC1}:{ACC1+15}], {v4(W1+4*t)}, {v4(sl)}, " + ("0" if t == 0 else f"v[{ACC1}:{ACC1+15}]"))
        if t >= 1 and t + 7 < 36:
            a(f"ds_read_b128 {v4(RING+4*((t+7) % 8))}, v2 offset:{(t+7)*1024}")
    a("s_nop 7\ns_nop 3")
    for r in range(16): a(f"v_max_f32 v{ACC1+r}, 0, v{ACC1+r}")
    for u in range(2):
        for k in range(4):
            a(f"v_cvt_pk_bf16_f32 v{RING+4*u+k}, v{ACC1+8*u+2*k}, v{ACC1+8*u+2*k+1}")
    a(f"ds_write_b128 v9, {v4(RING)}\nds_write_b128 v9, {v4(RING+4)} offset:1024")
    a("s_waitcnt vmcnt(0)")
    nd = a.label("Lff")
    a(f"""s_cmp_lg_u32 s{S_W}, 0
    s_cbranch_scc1 {nd}
    s_mov_b64 exec, 0xff
    v_cmp_eq_u32 vcc, 0, v11
    s_mov_b64 exec, -1
    s_cmp_eq_u64 vcc, 0
    s_cselect_b32 s{S_A+1}, 1, 0
    s_cmp_lt_u32 s{S_SEG}, 63
    s_cselect_b32 s{S_A+1}, s{S_A+1}, 0
    v_mov_b32 v10, s{S_A+1}
    v_mov_b32 v11, {DEC}
    ds_write_b32 v11, v10
    {nd}:
    s_waitcnt lgkmcnt(0)
    s_barrier""")
    for k in range(8): a(f"ds_read_b128 {v4(HID+4*k)}, v8 offset:{k*1024}")
    a(f"v_mov_b32 v11, {DEC}\nds_read_b32 v10, v11")
    ns = a.label("Lff"); npf = a.label("Lff")
    a(f"""s_cmp_lg_u32 s{S_W}, 0
    s_cbranch_scc1 {ns}
    s_cmp_eq_u32 s{S_PEND}, 0
    s_cbranch_scc1 {ns}
    s_sub_u32 s{S_SEG}, s{S_SEG}, 1""")
    flag_addr(a, S_A+1, FG_PB, S_SEG, 256, S_IDX, 4)
    signal(a, S_A+1, stage=6)
    a(f"""s_add_u32 s{S_SEG}, s{S_SEG}, 1
    {ns}:
    s_mov_b32 s{S_PEND}, 0
    s_waitcnt lgkmcnt(0)
    v_readfirstlane_b32 s{S_B+10}, v10
    s_cmp_eq_u32 s{S_B+10}, 0
    s_cbranch_scc1 {npf}
    s_add_u32 s{S_B+8}, s{S_B+8}, {SEGB}
    s_xor_b32 s{S_B+12}, s{S_B+9}, {SEGB}""")
    dma_seg(a, S_B+8, S_B+12)
    a(f"{npf}:")
    a(f"""s_mul_i32 s{S_B+13}, s{S_SEG}, 36
    s_add_u32 s{S_B+13}, s{S_B+13}, s{S_IDX}
    s_mul_i32 s{S_B+13}, s{S_B+13}, {SEGB}
    s_add_u32 s{S_B+13}, s{S_B+13}, {WS_PB}
    s_lshl_b32 s{S_B+14}, s{S_W}, 8
    s_add_u32 s{S_B+13}, s{S_B+13}, s{S_B+14}""")
    def ffn2(i):
        ac = 160 + 16*(i % 2)
        for ks in range(8):
            a(f"v_mfma_f32_32x32x16_bf16 a[{ac}:{ac+15}], a[{(i*8+ks)*4}:{(i*8+ks)*4+3}], {v4(HID+4*ks)}, " + ("0" if ks == 0 else f"a[{ac}:{ac+15}]"))
    def epi(i):
        ac = 160 + 16*(i % 2)
        for r in range(16): a(f"v_accvgpr_read_b32 v{ACC1+r}, a{ac+r}")
        for u in range(2):
            for k in range(4):
                a(f"v_cvt_pk_bf16_f32 v{RING+8+4*u+k}, v{ACC1+8*u+2*k}, v{ACC1+8*u+2*k+1}")
        for u in range(2):
            a(f"buffer_store_dwordx4 {v4(RING+8+4*u)}, v7, {WSR}, s{S_B+13} offen offset:{u*128} sc1")
        a(f"s_add_u32 s{S_B+13}, s{S_B+13}, 1024")
        a("s_nop 1")
    ffn2(0); ffn2(1); epi(0); ffn2(2); epi(1); ffn2(3); epi(2)
    sk4 = a.label("Lff"); e4 = a.label("Lff")
    a(f"s_cmp_lt_u32 s{S_W}, 2\ns_cbranch_scc0 {sk4}")
    ffn2(4); epi(3); a("s_nop 7\ns_nop 3"); epi(4)
    a(f"s_branch {e4}\n{sk4}:\ns_nop 7\ns_nop 3")
    epi(3)
    a(f"{e4}:")
    slow = a.label("Lff"); fin = a.label("Lff"); sk = a.label("Lff")
    a(f"""s_cmp_eq_u32 s{S_B+10}, 0
    s_cbranch_scc1 {slow}
    s_mov_b32 s{S_PEND}, 1
    s_add_u32 s{S_SEG}, s{S_SEG}, 1
    s_add_u32 s{S_B+7}, s{S_B+7}, 128
    s_xor_b32 s{S_B+9}, s{S_B+9}, {SEGB}
    s_branch {lp}
    {slow}:
    s_waitcnt vmcnt(0)
    s_barrier
    s_cmp_lg_u32 s{S_W}, 0
    s_cbranch_scc1 {sk}""")
    flag_addr(a, S_A+1, FG_PB, S_SEG, 256, S_IDX, 4)
    signal(a, S_A+1, stage=6)
    a(f"""{sk}:
    s_add_u32 s{S_SEG}, s{S_SEG}, 1
    s_cmp_lt_u32 s{S_SEG}, 64
    s_cbranch_scc0 {fin}
    s_add_u32 s{S_B+7}, s{S_B+7}, 128""")
    wg_wait_flags(a, S_B+7, 0, 8, L_fail)
    a(f"s_add_u32 s{S_B+8}, s{S_B+8}, {SEGB}\ns_xor_b32 s{S_B+9}, s{S_B+9}, {SEGB}")
    dma_seg(a, S_B+8, S_B+9)
    a(f"""s_waitcnt vmcnt(0)
    s_branch {lp}
    {fin}:
    s_waitcnt vmcnt(0)
    """)
```

```python
import sys
from asmlib import *
from layout import *
import roles as R
import importlib
args = dict(x.split("=") for x in sys.argv[2:])
T = importlib.import_module(args.get("mod","team9"))
KN = args.get("kn", "sequential_preLN__memory_aug_recurrent_mem_tr__dense_activation_relu__prompt_kernel")
enable = set(args.get("roles","team,t1,alpha,ffn,b0,gamma,ln").split(","))
report = int(args.get("report","0"))
R.REPORT[0] = bool(report)
hdr = open("sequential_preLN__memory_aug_recurrent_mem_tr__dense_activation_relu__prompt.s.ref").read().split("\n")
a = Asm()
for l in hdr:
    if l.startswith("; @launch"): a.raw("; @launch grid=(256,1,1) block=(256,1,1) lds=163840")
    elif l.startswith(";"): a.raw(l)
    else: break
a.raw('.amdgcn_target "amdgcn-amd-amdhsa--gfx950"')
a.raw(".text")
a.raw(kernel_header(KN))
S_WS, S_DBG, S_W = 8, 16, 20
S_ROLE = 4
a(f"""
s_cmp_ge_u32 s2, 256
s_cbranch_scc1 L_end
s_load_dwordx2 s[4:5], s[0:1], {KA_DBG}
s_load_dwordx2 s[6:7], s[0:1], {KA_WS}
s_getreg_b32 s3, hwreg(HW_REG_XCC_ID)
s_and_b32 s3, s3, 7
v_lshrrev_b32 v1, 6, v0
s_waitcnt lgkmcnt(0)
s_mov_b32 s{S_WS}, s6
s_mov_b32 s{S_WS+1}, s7
s_mov_b32 s{S_WS+2}, {WS_SIZE}
s_mov_b32 s{S_WS+3}, 0x20000
s_mov_b32 s{S_DBG}, s4
s_mov_b32 s{S_DBG+1}, s5
s_mov_b32 s{S_DBG+2}, 256
s_mov_b32 s{S_DBG+3}, 0x20000
v_readfirstlane_b32 s{S_W}, v1
s_mov_b32 s23, 0
s_cmp_lg_u32 s{S_W}, 0
s_cbranch_scc1 L_norank
s_lshl_b32 s24, s3, 2
v_mov_b32 v3, s24
v_mov_b32 v4, 1
s_mov_b64 exec, 1
buffer_atomic_add v4, v3, s[{S_DBG}:{S_DBG+3}], 0 offen sc0 sc1
s_waitcnt vmcnt(0)
v_readfirstlane_b32 s25, v4
s_mov_b32 s26, 0                     ; role: team
s_cmp_eq_u32 s3, 0
s_cselect_b32 s27, 1, 0
s_cmp_lt_u32 s25, 32
s_cselect_b32 s27, s27, 0            ; 1 = native team member
s_cmp_eq_u32 s27, 1
s_cbranch_scc1 L_have
v_mov_b32 v3, {DB_WORKER*4}
v_mov_b32 v4, 1
buffer_atomic_add v4, v3, s[{S_DBG}:{S_DBG+3}], 0 offen sc0 sc1
s_waitcnt vmcnt(0)
v_readfirstlane_b32 s25, v4
s_mov_b32 s26, 1
s_cmp_lt_u32 s25, 224
s_cbranch_scc1 L_have
; drafted into the team (fewer than 32 workgroups on XCC 0): head = 31 - (wi-224), mark impure
s_sub_u32 s25, 255, s25
s_mov_b32 s26, 0
v_mov_b32 v3, {DB_IMPURE*4}
v_mov_b32 v4, 1
buffer_atomic_add v4, v3, s[{S_DBG}:{S_DBG+3}], 0 offen sc1
s_waitcnt vmcnt(0)
L_have:
s_mov_b64 exec, -1
s_lshl_b32 s26, s26, 16
s_or_b32 s25, s25, s26
v_mov_b32 v5, s25
v_mov_b32 v6, 0
ds_write_b32 v6, v5
s_waitcnt lgkmcnt(0)
L_norank:
s_barrier
v_mov_b32 v6, 0
ds_read_b32 v5, v6
s_waitcnt lgkmcnt(0)
v_readfirstlane_b32 s25, v5
s_barrier
s_and_b32 s21, s25, 0xffff
s_lshr_b32 s26, s25, 16
;;REPSTART
s_cmp_eq_u32 s26, 0
s_cbranch_scc1 L_team
""")
a(f"""
s_cmp_lg_u32 s21, 0
s_cbranch_scc1 L_noinit
v_and_b32 v1, 63, v0
v_lshlrev_b32 v1, 4, v1
v_mov_b32 v4, 0
v_mov_b32 v5, 0
v_mov_b32 v6, 0
v_mov_b32 v7, 0
s_mul_i32 s24, s{S_W}, {FLAGS_BYTES//4}
s_add_u32 s24, s24, {WS_FLAGS}
""")
for i in range(FLAGS_BYTES//4096):
    a(f"buffer_store_dwordx4 v[4:7], v1, s[{S_WS}:{S_WS+3}], s24 offen sc1")
    a("s_add_u32 s24, s24, 1024")
a(f"""s_waitcnt vmcnt(0)
s_barrier
s_cmp_lg_u32 s{S_W}, 0
s_cbranch_scc1 L_noinit
s_mov_b64 exec, 1
v_mov_b32 v3, {DB_INIT*4}
v_mov_b32 v4, 1
buffer_atomic_add v4, v3, s[{S_DBG}:{S_DBG+3}], 0 offen sc1
s_mov_b64 exec, -1
L_noinit:
s_cmp_lt_u32 s21, 96
s_cbranch_scc1 L_t1
s_cmp_lt_u32 s21, 128
s_cbranch_scc1 L_alpha
s_cmp_lt_u32 s21, 164
s_cbranch_scc1 L_ffn
s_mov_b32 s58, s21
s_sub_u32 s21, s21, 164
""")
if "ln" in enable:
    R.wait_init(a, "L_wfail")
    R.role_ln(a, "L_wfail", 0, 60)
a("""s_mov_b32 s21, s58
s_cmp_lt_u32 s21, 180
s_cbranch_scc1 L_b0
s_cmp_lt_u32 s21, 196
s_cbranch_scc1 L_gamma
s_branch L_end
""")
def far(label_from, fn, name):
    a(f"{label_from}:")
    if name in enable: fn()
    a("s_branch L_end")
far("L_t1", lambda: R.role_t1(a, "L_wfail"), "t1")
def late(n):
    for _ in range(n): a("s_sleep 127")
DL = int(args.get("late","2"))
far("L_alpha", lambda: (late(DL), a("s_sub_u32 s21, s21, 96"), R.role_alpha(a, "L_wfail")), "alpha")
far("L_ffn", lambda: (late(DL), a("s_sub_u32 s21, s21, 128"), R.role_ffn(a, "L_wfail")), "ffn")
far("L_b0", lambda: (a("s_sub_u32 s21, s21, 164"), R.role_reduce(a, "L_wfail", False)), "b0")
far("L_gamma", lambda: (a("s_sub_u32 s21, s21, 180"), R.role_reduce(a, "L_wfail", True)), "gamma")
a("L_wfail:\ns_branch L_end")
a("L_team:")
if "team" in enable:
    g = {k: v for k, v in vars(T).items() if k.startswith(("S_", "V_"))}
    S_T0 = T.S_T0
    a(f"""
    s_and_b32 s{S_T0}, s{T.S_W}, 1
    s_lshl_b32 s{S_T0}, s{S_T0}, 5
    s_add_u32 s{T.S_CT}, s{T.S_H}, s{S_T0}
    s_cmp_lt_u32 s{T.S_CT}, 36
    s_cselect_b32 s{S_T0+1}, 1, 0
    s_cmp_lt_u32 s{T.S_W}, 2
    s_cselect_b32 s{T.S_ISRED}, s{S_T0+1}, 0
    s_cselect_b32 s{T.S_ISRST}, 0, s{S_T0+1}
    s_min_u32 s{T.S_CT}, s{T.S_CT}, 35
    s_lshr_b32 s{S_T0}, s{T.S_CT}, 2
    s_and_b32 s{S_T0+1}, s{S_T0}, 1
    s_cmp_eq_u32 s{S_T0+1}, 0
    s_cselect_b32 s{T.S_EARLY}, 1, 0
    s_cmp_eq_u32 s{S_T0}, 8
    s_cselect_b32 s{T.S_EARLY}, 0, s{T.S_EARLY}
    """)
    t = T.Team(a, stamps=int(args.get('stamps','0')), sel=tuple(int(x) for x in args.get('sel','0,1,2,3,4,5,6,7').split(',')), nsteps=64, d1=int(args.get('d1','800')), d2=int(args.get('d2','0')), d3=int(args.get('d3','320')), flags=True, spin_cap=3000000, opts=('rep' if report else '')+args.get('topts',''))
    def rep_team(k):
        a(f"""s_memrealtime s[100:101]
        s_waitcnt lgkmcnt(0)
        s_mov_b32 s{S_T0+2}, {WS_REP + 0x8000 + k*64}
        s_mov_b64 exec, 1
        v_mov_b32 v20, s100
        buffer_atomic_umax v20, off, {W}, s{S_T0+2} sc1
        s_mov_b64 exec, -1
        s_waitcnt vmcnt(0)""")
    W = f"s[{S_WS}:{S_WS+3}]"
    if report: rep_team(0)
    t.consts()
    if report: rep_team(4)
    t.load_weights(stampf=(lambda i: rep_team(4+i)) if report else None, mid=lambda: t.init_mailboxes('sc1'))
    a("s_waitcnt vmcnt(0) lgkmcnt(0)")
    if report: rep_team(2)
    t.team_barrier(DB_TEAMBAR*4)
    W = f"s[{S_WS}:{S_WS+3}]"
    def poll(srd, s_off, lo, hi):
        lp = a.label("Ltp"); ok = a.label("Ltp")
        mask = ((1 << hi) - 1) ^ ((1 << lo) - 1)
        a(f"""s_mov_b64 exec, {mask}
        v_lshrrev_b32 v21, 2, v{T.V_L16}
        {lp}:
        buffer_load_dword v20, v21, {srd}, s{s_off} offen sc1
        s_waitcnt vmcnt(0)
        v_cmp_eq_u32 vcc, 0, v20
        s_cbranch_vccz {ok}
        s_add_u32 s{T.S_SPIN}, s{T.S_SPIN}, 1
        s_cmp_gt_u32 s{T.S_SPIN}, 3000000
        s_cbranch_scc1 L_tfail
        s_sleep 2
        s_branch {lp}
        {ok}:
        s_mov_b64 exec, -1""")
    a(f"s_mov_b32 s{T.S_SPIN}, 0")
    a(f"s_mov_b32 s{S_T0+1}, {DB_INIT*4}")
    poll(f"s[{S_DBG}:{S_DBG+3}]", S_T0+1, 0, 1)
    a(f"s_lshl_b32 s{S_T0+1}, s{T.S_H}, 4\ns_add_u32 s{S_T0+1}, s{S_T0+1}, {FG_QKV}")
    poll(W, S_T0+1, 1, 3)
    a(f"s_add_u32 s{S_T0+1}, s{S_T0+1}, 512")
    poll(W, S_T0+1, 1, 3)
    wl = a.label("Lwm")
    a(f"s_cmp_lg_u32 s{T.S_W}, 3\ns_cbranch_scc1 {wl}")
    for sg in range(1):
        for base in (WS_KF, WS_VF):
            a(f"s_lshl_b32 s{S_T0+1}, s{T.S_H}, 13\ns_add_u32 s{S_T0+1}, s{S_T0+1}, {base + sg*32*8192}")
            a(f"buffer_load_dword v24, v{T.V_WARM}, {W}, s{S_T0+1} offen sc1")
    a(f"s_waitcnt vmcnt(0)\n{wl}:")
    a(f"""s_mov_b64 exec, 1
    s_mov_b32 s{S_T0+1}, {DB_IMPURE*4}
    buffer_load_dword v20, off, s[{S_DBG}:{S_DBG+3}], s{S_T0+1} sc1
    s_waitcnt vmcnt(0)
    v_readfirstlane_b32 s{S_T0}, v20
    s_mov_b64 exec, -1
    s_cmp_lg_u32 s{S_T0}, 0
    s_cbranch_scc1 L_slowteam
    """)
    if report: rep_team(1)
    t.main_loop("L_tfail", "L_tdone", sc="", tag="f")
    a("L_slowteam:")
    t2 = T.Team(a, stamps=False, nsteps=64, d1=1600, d2=600, d3=320, flags=True, spin_cap=3000000)
    t2.main_loop("L_tfail", "L_tdone", sc="sc1", tag="s")
    a("L_tdone:")
    if report: rep_team(3)
    a(f"""
    s_waitcnt vmcnt(0)
    ;;REPEND
    s_barrier
    s_cmp_lg_u32 s{T.S_W}, 3
    s_cbranch_scc1 L_tfail
    s_lshl_b32 s{S_T0}, s{T.S_H}, 4
    s_add_u32 s{S_T0}, s{S_T0}, {FG_M + 62*512}
    s_mov_b64 exec, 1
    v_mov_b32 v20, 1
    buffer_store_dword v20, off, {W}, s{S_T0} sc1
    s_add_u32 s{S_T0}, s{S_T0}, 512
    buffer_store_dword v20, off, {W}, s{S_T0} sc1
    s_mov_b64 exec, -1
    L_tfail:
    """)
    if int(args.get('stamps','0')):
        a(f"""s_lshl_b32 s{S_T0}, s{T.S_H}, 2
        s_add_u32 s{S_T0}, s{S_T0}, s{T.S_W}
        s_lshl_b32 s{S_T0}, s{S_T0}, 6
        s_add_u32 s{S_T0}, s{S_T0}, {WS_REP + 0x9000}
        v_mov_b32 v3, 0
        s_mov_b64 exec, 1""")
        for q in range(3):
            for i in range(4): a(f"v_mov_b32 v{8+i}, s{min(84+q*4+i,93)}")
            if q == 2: a(f"v_mov_b32 v11, s{T.S_SPIN}")
            a(f"buffer_store_dwordx4 v[8:11], v3, {W}, s{S_T0} offen offset:{q*16}")
            a("s_nop 1")
        a("s_mov_b64 exec, -1")
a("""
L_end:
s_waitcnt vmcnt(0)
s_endpgm
""")
a.raw(kernel_desc(KN))
open(sys.argv[1],"w").write(a.text())
```

```python
from asmlib import *
from layout import *
import struct

S_WS = 8; S_TMP = 12; S_DBG = 16
S_W = 20; S_IDX = 21; S_SEG = 22; S_SPIN = 23
S_A = 24
S_IO = 40
S_B = 44
WSR = f"s[{S_WS}:{S_WS+3}]"
TMPR = f"s[{S_TMP}:{S_TMP+3}]"
IOR = f"s[{S_IO}:{S_IO+3}]"
def v4(b): return f"v[{b}:{b+3}]"
def v2(b): return f"v[{b}:{b+1}]"
def f2h(x): return struct.unpack("<I", struct.pack("<f", x))[0]
CAP = 3000000

def make_srd(a, dst, ka_off, nbytes):
    a(f"""s_load_dwordx2 s[{S_A}:{S_A+1}], s[0:1], {ka_off}
    s_waitcnt lgkmcnt(0)
    s_mov_b32 s{dst}, s{S_A}
    s_mov_b32 s{dst+1}, s{S_A+1}
    s_mov_b32 s{dst+2}, {nbytes}
    s_mov_b32 s{dst+3}, 0x20000""")

def wait_flags(a, s_off, lo, hi, L_fail, vt=250, sleep=2):
    lp = a.label("Lwf"); ok = a.label("Lwf")
    mask = ((1 << hi) - 1) ^ ((1 << lo) - 1)
    a(f"""s_mov_b32 exec_lo, {mask & 0xffffffff:#x}
    s_mov_b32 exec_hi, {mask >> 32:#x}
    v_mbcnt_lo_u32_b32 v{vt}, -1, 0
    v_mbcnt_hi_u32_b32 v{vt}, -1, v{vt}
    v_lshlrev_b32 v{vt}, 2, v{vt}
    {lp}:
    buffer_load_dword v{vt+1}, v{vt}, {WSR}, s{s_off} offen sc1
    s_waitcnt vmcnt(0)
    v_cmp_eq_u32 vcc, 0, v{vt+1}
    s_cbranch_vccz {ok}
    s_add_u32 s{S_SPIN}, s{S_SPIN}, 1
    s_cmp_gt_u32 s{S_SPIN}, {CAP}
    s_cbranch_scc1 {L_fail}
    {("s_sleep %d" % (sleep if SLEEP[0] is None else SLEEP[0])) if (sleep if SLEEP[0] is None else SLEEP[0]) else ""}
    s_branch {lp}
    {ok}:
    s_mov_b64 exec, -1""")

def wg_wait_flags(a, s_off, lo, hi, L_fail, sleep=2):
    sk = a.label("Lww")
    a(f"s_cmp_lg_u32 s{S_W}, 0\ns_cbranch_scc1 {sk}")
    wait_flags(a, s_off, lo, hi, L_fail, sleep=sleep)
    a(f"{sk}:\ns_barrier")

REPORT = [False]
SLEEP = [None]
OUTF = ['']
ASLEEP = [8]
NA1 = [64]
def stamp_max(a, stage, vt):
    if not REPORT[0]: return
    a(f"""s_memrealtime s[60:61]
    s_waitcnt lgkmcnt(0)
    s_lshl_b32 s62, s{S_SEG}, 6
    s_add_u32 s62, s62, {WS_REP + stage*4096}
    s_mov_b64 exec, 1
    v_mov_b32 v{vt}, s60
    buffer_atomic_umax v{vt}, off, {WSR}, s62 sc1
    s_mov_b64 exec, -1""")
def signal(a, s_off, vt=250, stage=7):
    stamp_max(a, stage, vt)
    a(f"""s_mov_b64 exec, 1
    v_mov_b32 v{vt}, 1
    buffer_store_dword v{vt}, off, {WSR}, s{s_off} sc1
    s_mov_b64 exec, -1""")

def flag_addr(a, dst, base, s_seg, seg_stride, s_idx=None, idx_stride=0, const=0):
    a(f"s_mul_i32 s{dst}, s{s_seg}, {seg_stride}")
    a(f"s_add_u32 s{dst}, s{dst}, {base + const}")
    if s_idx is not None:
        a(f"s_mul_i32 s{S_A+13}, s{s_idx}, {idx_stride}")
        a(f"s_add_u32 s{dst}, s{dst}, s{S_A+13}")

def wait_init(a, L_fail):
    lp = a.label("Lwi"); ok = a.label("Lwi")
    a(f"""s_mov_b64 exec, 1
    v_mov_b32 v250, {DB_INIT*4}
    {lp}:
    buffer_load_dword v251, v250, s[{S_DBG}:{S_DBG+3}], 0 offen sc1
    s_waitcnt vmcnt(0)
    v_readfirstlane_b32 s{S_A+14}, v251
    s_cmp_lg_u32 s{S_A+14}, 0
    s_cbranch_scc1 {ok}
    s_add_u32 s{S_SPIN}, s{S_SPIN}, 1
    s_cmp_gt_u32 s{S_SPIN}, {CAP}
    s_cbranch_scc1 {L_fail}
    s_sleep 1
    s_branch {lp}
    {ok}:
    s_mov_b64 exec, -1""")

def round_bf16(a, dst, src, tmp):
    a(f"v_cvt_pk_bf16_f32 v{tmp}, v{src}, v{src}")
    a(f"v_lshlrev_b32 v{dst}, 16, v{tmp}")

def reduce8(a, r, t):
    for mod in ("quad_perm:[1,0,3,2]", "quad_perm:[2,3,0,1]", "row_half_mirror"):
        a("s_nop 1")
        a(f"v_add_f32_dpp v{r}, v{r}, v{r} {mod} row_mask:0xf bank_mask:0xf")

def role_ln(a, L_fail, first, stride):
    make_srd(a, S_IO, KA_X, 2048*1152)
    lp = a.label("Lln"); done = a.label("Lln")
    a(f"""
    v_and_b32 v1, 63, v0
    v_lshrrev_b32 v2, 3, v1            ; l>>3
    v_and_b32 v3, 7, v1                ; part
    s_lshl_b32 s{S_A}, s{S_W}, 3
    v_add_u32 v4, s{S_A}, v2           ; token
    v_mul_u32_u24 v5, 1152, v4
    v_lshlrev_b32 v6, 4, v3
    v_add_u32 v5, v5, v6
    v_lshrrev_b32 v6, 1, v3
    v_lshlrev_b32 v7, 10, v6
    v_and_b32 v8, 1, v3
    v_lshlrev_b32 v9, 9, v8
    v_lshlrev_b32 v10, 4, v4
    v_add3_u32 v7, v7, v9, v10
    v_lshrrev_b32 v9, 2, v4
    v_mul_u32_u24 v9, 4608, v9
    v_and_b32 v10, 3, v4
    v_lshlrev_b32 v10, 4, v10
    v_lshlrev_b32 v11, 7, v6
    v_lshlrev_b32 v12, 3, v8
    v_add3_u32 v9, v9, v10, v11
    v_add_u32 v9, v9, v12
    s_mov_b32 s{S_SEG}, s{S_IDX}
    {lp}:
    s_cmp_ge_u32 s{S_SEG}, 64
    s_cbranch_scc1 {done}
    s_mul_i32 s{S_A}, s{S_SEG}, {SEGB}
    """)
    X = 32; F = 80
    for i in range(9):
        a(f"buffer_load_dwordx4 {v4(X+4*i)}, v5, {IOR}, s{S_A} offen offset:{i*128} nt")
    a(f"s_add_u32 s{S_A+1}, s{S_A}, {WS_XP}")
    a(f"s_add_u32 s{S_A+2}, s{S_A+1}, 4096")
    a("s_waitcnt vmcnt(0)")
    for i in range(9):
        so = S_A+1 if i < 8 else S_A+2
        off = (i % 8)*512
        a(f"buffer_store_dwordx2 {v2(X+4*i)}, v9, {WSR}, s{so} offen offset:{off} sc1")
        a(f"buffer_store_dwordx2 {v2(X+4*i+2)}, v9, {WSR}, s{so} offen offset:{off+64} sc1")
    for k in range(36):
        a(f"v_lshlrev_b32 v{F+2*k}, 16, v{X+k}")
        a(f"v_and_b32 v{F+2*k+1}, 0xffff0000, v{X+k}")
    a(f"v_pk_add_f32 v[14:15], {v2(F)}, {v2(F+2)}")
    for k in range(2, 36):
        a(f"v_pk_add_f32 v[14:15], v[14:15], {v2(F+2*k)}")
    a("v_add_f32 v14, v14, v15")
    reduce8(a, 14, 15)
    a(f"v_mul_f32 v14, {f2h(1.0/576):#x}, v14")
    a("v_mov_b32 v16, 0\nv_mov_b32 v17, 0")
    for k in range(36):
        a(f"v_pk_add_f32 v[18:19], {v2(F+2*k)}, v[14:15] op_sel_hi:[1,0] neg_lo:[0,1] neg_hi:[0,1]")
        a(f"v_pk_fma_f32 v[16:17], v[18:19], v[18:19], v[16:17]")
    a("v_add_f32 v16, v16, v17")
    reduce8(a, 16, 17)
    a(f"v_mul_f32 v16, {f2h(1.0/576):#x}, v16")
    round_bf16(a, 16, 16, 17)
    a(f"v_add_f32 v16, {f2h(1e-5):#x}, v16")
    round_bf16(a, 16, 16, 17)
    a("v_sqrt_f32 v16, v16\ns_nop 0")
    round_bf16(a, 16, 16, 17)
    a("v_rcp_f32 v16, v16")
    round_bf16(a, 14, 14, 17)
    for k in range(36):
        a(f"v_pk_add_f32 v[18:19], {v2(F+2*k)}, v[14:15] op_sel_hi:[1,0] neg_lo:[0,1] neg_hi:[0,1]")
        a(f"v_cvt_pk_bf16_f32 v20, v18, v19")
        a(f"v_lshlrev_b32 v18, 16, v20")
        a(f"v_and_b32 v19, 0xffff0000, v20")
        a(f"v_pk_mul_f32 v[18:19], v[18:19], v[16:17] op_sel_hi:[1,0]")
        a(f"v_cvt_pk_bf16_f32 v{X+k}, v18, v19")
    a(f"s_add_u32 s{S_A+1}, s{S_A}, {WS_XN}")
    for i in range(9):
        a(f"buffer_store_dwordx4 {v4(X+4*i)}, v7, {WSR}, s{S_A+1} offen sc1")
        a(f"s_add_u32 s{S_A+1}, s{S_A+1}, 4096")
    a("s_waitcnt vmcnt(0)")
    a("s_barrier")
    sk = a.label("Lln")
    a(f"s_cmp_lg_u32 s{S_W}, 0\ns_cbranch_scc1 {sk}")
    flag_addr(a, S_A+3, FG_XN, S_SEG, 64)
    signal(a, S_A+3, stage=0)
    a(f"""{sk}:
    s_add_u32 s{S_SEG}, s{S_SEG}, {stride}
    s_branch {lp}
    {done}:
    s_waitcnt vmcnt(0)
    """)

NT = {"t1": "nt", "ffn": "nt", "alpha": "nt"}
def load_wT_frags(a, srd, row_stride, col_byte_sgpr, nrows, dst0, swz_rows=True, kmap="nat", lds0=0, ncolgran=16, nt="nt"):
    nfr = nrows // 16
    ninstr = nrows // 4
    per_wave = ninstr // 4
    lp = a.label("Lwd")
    a(f"""
    v_and_b32 v1, 63, v0
    v_lshrrev_b32 v2, 4, v1            ; row in group (0..3)
    v_and_b32 v3, 15, v1               ; pos
    v_lshlrev_b32 v4, 2, v2
    v_xor_b32 v3, v3, v4               ; source granule = pos ^ (row<<2)
    v_lshlrev_b32 v3, 4, v3
    v_mul_u32_u24 v4, {row_stride}, v2
    v_add_u32 v3, v3, v4               ; per-lane source offset
    s_mul_i32 s{S_A+4}, s{S_W}, {per_wave}        ; first instr index
    s_lshl_b32 s{S_A+5}, s{S_A+4}, 10
    s_add_u32 s{S_A+5}, s{S_A+5}, {lds0}          ; LDS dst
    s_mul_i32 s{S_A+6}, s{S_A+4}, {4*row_stride}
    s_add_u32 s{S_A+6}, s{S_A+6}, s{col_byte_sgpr}
    s_mov_b32 s{S_A+7}, 0
    {lp}:
    s_mov_b32 m0, s{S_A+5}
    s_add_u32 s{S_A+5}, s{S_A+5}, 1024
    buffer_load_dwordx4 v3, {srd}, s{S_A+6} offen {nt} lds
    s_add_u32 s{S_A+6}, s{S_A+6}, {4*row_stride}
    s_add_u32 s{S_A+7}, s{S_A+7}, 1
    s_cmp_lt_u32 s{S_A+7}, {per_wave}
    s_cbranch_scc1 {lp}
    ; tr-read address: lane (gi=l>>4, r'=(l>>2)&3, c'=l&3): kg=gi>>1 ; col granule q = 4w + 2(gi&1) + (c'>>1)
    v_lshrrev_b32 v4, 4, v1            ; gi
    v_lshrrev_b32 v5, 2, v1
    v_and_b32 v5, 3, v5                ; r'
    v_and_b32 v6, 3, v1                ; c'
    v_lshrrev_b32 v7, 1, v4            ; kg
    v_and_b32 v8, 1, v4                ; gi&1
    v_lshlrev_b32 v8, 1, v8
    v_lshrrev_b32 v9, 1, v6
    s_lshl_b32 s{S_A+4}, s{S_W}, 2
    v_add3_u32 v8, v8, v9, s{S_A+4}    ; q
    v_lshlrev_b32 v9, 2, v5            ; f(d) = (d&3)<<2 = r'<<2  (row offsets below keep d&3 = r')
    v_xor_b32 v8, v8, v9
    v_lshlrev_b32 v8, 4, v8
    v_and_b32 v9, 1, v6
    v_lshlrev_b32 v9, 3, v9
    v_add_u32 v8, v8, v9               ; col part
    v_lshlrev_b32 v9, {3 if kmap=='nat' else 2}, v7     ; kg*8 (nat) or kg*4 (pc)
    v_add_u32 v9, v9, v5               ; + r'
    v_lshlrev_b32 v9, 8, v9
    v_add3_u32 v10, v8, v9, {0}
    v_add_u32 v10, {lds0}, v10
    s_waitcnt vmcnt(0)
    s_barrier
    """.replace("v_add3_u32 v10, v8, v9, 0", "v_add_u32 v10, v8, v9"))
    second = 4*256 if kmap == 'nat' else 8*256
    for t in range(nfr):
        off = (t % 8)*4096
        if t and t % 8 == 0: a("v_add_u32 v10, 32768, v10")
        a(f"ds_read_b64_tr_b16 {v2(dst0+4*t)}, v10 offset:{off}")
        a(f"ds_read_b64_tr_b16 {v2(dst0+4*t+2)}, v10 offset:{off+second}")
        if t % 4 == 3: a("s_waitcnt lgkmcnt(4)")
    a("s_waitcnt lgkmcnt(0)")
    a("s_barrier")

def dma_seg(a, s_goff, lds_base_sgpr):
    a(f"""s_mul_i32 s{S_A+8}, s{S_W}, 9216
    s_add_u32 s{S_A+9}, s{S_A+8}, s{lds_base_sgpr}
    s_add_u32 s{S_A+8}, s{S_A+8}, s{s_goff}""")
    for i in range(9):
        a(f"s_mov_b32 m0, s{S_A+9}")
        a(f"s_add_u32 s{S_A+9}, s{S_A+9}, 1024")
        a(f"buffer_load_dwordx4 v1, {WSR}, s{S_A+8} offen sc1 lds")
        a(f"s_add_u32 s{S_A+8}, s{S_A+8}, 1024")

def role_t1(a, L_fail):
    WF = 64; ACC = 16; RING = 32
    vform = a.label("Lt1v");
    a(f"""
    s_lshr_b32 s{S_B}, s{S_IDX}, 5            ; mat
    s_and_b32 s{S_B+1}, s{S_IDX}, 31          ; h
    s_lshl_b32 s{S_B+2}, s{S_B}, 3
    s_add_u32 s{S_B+2}, s{S_B+2}, {KA_WQ}
    s_load_dwordx2 s[{S_A}:{S_A+1}], s[0:1], s{S_B+2}
    s_waitcnt lgkmcnt(0)
    s_mov_b32 s{S_TMP}, s{S_A}
    s_mov_b32 s{S_TMP+1}, s{S_A+1}
    s_mov_b32 s{S_TMP+2}, {576*8192}
    s_mov_b32 s{S_TMP+3}, 0x20000
    s_lshl_b32 s{S_B+3}, s{S_B+1}, 8          ; h*256 bytes
    """)
    load_wT_frags(a, TMPR, 8192, S_B+3, 576, WF, kmap='nat', nt=NT['t1'])
    a(f"""
    s_lshl_b32 s{S_B+4}, s{S_B}, 24
    s_add_u32 s{S_B+4}, s{S_B+4}, {WS_QF}
    s_lshl_b32 s{S_B+5}, s{S_B+1}, 13
    s_add_u32 s{S_B+4}, s{S_B+4}, s{S_B+5}
    s_lshl_b32 s{S_B+5}, s{S_W}, 11
    s_add_u32 s{S_B+4}, s{S_B+4}, s{S_B+5}
    s_lshl_b32 s{S_B+6}, s{S_B+1}, 4
    s_lshl_b32 s{S_B+5}, s{S_B}, 2
    s_add_u32 s{S_B+6}, s{S_B+6}, s{S_B+5}
    s_add_u32 s{S_B+6}, s{S_B+6}, {FG_QKV}
    v_and_b32 v1, 63, v0
    v_lshlrev_b32 v1, 4, v1
    """)
    wait_init(a, L_fail)
    a(f"s_mov_b32 s{S_SEG}, 0\ns_mov_b32 s{S_B+7}, {FG_XN}")
    sk0 = a.label("Lt1")
    a(f"s_cmp_lg_u32 s{S_W}, 0\ns_cbranch_scc1 {sk0}")
    wait_flags(a, S_B+7, 0, 1, L_fail)
    a(f"s_add_u32 s{S_B+7}, s{S_B+7}, 64")
    wait_flags(a, S_B+7, 0, 1, L_fail)
    a(f"{sk0}:\ns_barrier")
    a(f"s_mov_b32 s{S_B+8}, {WS_XN}\ns_mov_b32 s{S_B+9}, 0")
    dma_seg(a, S_B+8, S_B+9)
    a("s_waitcnt vmcnt(0)")
    lp = a.label("Lt1"); nonext = a.label("Lt1"); st = a.label("Lt1"); nosig = a.label("Lt1")
    a(f"""{lp}:
    s_waitcnt vmcnt(2)
    s_barrier
    s_cmp_lg_u32 s{S_W}, 0
    s_cbranch_scc1 {nosig}
    s_cmp_lt_u32 s{S_SEG}, 2
    s_cbranch_scc1 {nosig}
    s_sub_u32 s{S_A+1}, s{S_SEG}, 2
    s_lshl_b32 s{S_A+1}, s{S_A+1}, 9
    s_add_u32 s{S_A+1}, s{S_A+1}, s{S_B+6}""")
    a(f"s_sub_u32 s{S_SEG}, s{S_SEG}, 2")
    signal(a, S_A+1, stage=2)
    a(f"s_add_u32 s{S_SEG}, s{S_SEG}, 2")
    a(f"""{nosig}:
    s_cmp_ge_u32 s{S_SEG}, 63
    s_cbranch_scc1 {nonext}
    s_add_u32 s{S_B+8}, s{S_B+8}, {SEGB}
    s_xor_b32 s{S_B+10}, s{S_B+9}, {SEGB}""")
    dma_seg(a, S_B+8, S_B+10)
    a(f"""{nonext}:
    s_add_u32 s{S_B+11}, s{S_SEG}, 2
    s_min_u32 s{S_B+11}, s{S_B+11}, 63
    s_lshl_b32 s{S_B+11}, s{S_B+11}, 6
    s_add_u32 s{S_B+11}, s{S_B+11}, {FG_XN}
    s_mov_b64 exec, 1
    buffer_load_dword v3, off, {WSR}, s{S_B+11} sc1
    s_mov_b64 exec, -1
    v_add_u32 v2, s{S_B+9}, v1""")
    for k in range(8): a(f"ds_read_b128 {v4(RING+4*k)}, v2 offset:{k*1024}")
    a(f"s_cmp_eq_u32 s{S_B}, 2\ns_cbranch_scc1 {vform}")
    def body(vmode):
        for t in range(36):
            sl = RING + 4*(t % 8)
            out = 7 if t == 0 else min(6, 35 - t)
            a(f"s_waitcnt lgkmcnt({out})")
            c = "0" if t == 0 else f"v[{ACC}:{ACC+15}]"
            if vmode: a(f"v_mfma_f32_32x32x16_bf16 v[{ACC}:{ACC+15}], {v4(sl)}, {v4(WF+4*t)}, {c}")
            else:     a(f"v_mfma_f32_32x32x16_bf16 v[{ACC}:{ACC+15}], {v4(WF+4*t)}, {v4(sl)}, {c}")
            if t >= 1 and t + 7 < 36:
                a(f"ds_read_b128 {v4(RING+4*((t+7) % 8))}, v2 offset:{(t+7)*1024}")
    body(False)
    a("s_nop 7\ns_nop 3")
    for u in range(2):
        for k in range(4):
            a(f"v_cvt_pk_bf16_f32 v{RING+4*u+k}, v{ACC+8*u+2*k}, v{ACC+8*u+2*k+1}")
    a(f"s_branch {st}")
    a(f"{vform}:")
    body(True)
    a("s_nop 7\ns_nop 3")
    for v in range(2):
        a(f"v_cvt_pk_bf16_f32 v{RING+4*v}, v{ACC+4*v}, v{ACC+4*v+1}")
        a(f"v_cvt_pk_bf16_f32 v{RING+4*v+1}, v{ACC+4*v+2}, v{ACC+4*v+3}")
        a(f"v_cvt_pk_bf16_f32 v{RING+4*v+2}, v{ACC+4*v+8}, v{ACC+4*v+9}")
        a(f"v_cvt_pk_bf16_f32 v{RING+4*v+3}, v{ACC+4*v+10}, v{ACC+4*v+11}")
    a(f"""{st}:
    s_mul_i32 s{S_A}, s{S_SEG}, {32*8192}
    s_add_u32 s{S_A}, s{S_A}, s{S_B+4}
    buffer_store_dwordx4 {v4(RING)}, v1, {WSR}, s{S_A} offen sc1
    buffer_store_dwordx4 {v4(RING+4)}, v1, {WSR}, s{S_A} offen offset:1024 sc1
    """)
    okp = a.label("Lt1")
    a(f"""s_cmp_lg_u32 s{S_W}, 0
    s_cbranch_scc1 {okp}
    s_waitcnt vmcnt(2)
    v_readfirstlane_b32 s{S_A+1}, v3
    s_cmp_lg_u32 s{S_A+1}, 0
    s_cbranch_scc1 {okp}""")
    wait_flags(a, S_B+11, 0, 1, L_fail)
    a(f"""{okp}:
    s_xor_b32 s{S_B+9}, s{S_B+9}, {SEGB}
    s_add_u32 s{S_SEG}, s{S_SEG}, 1
    s_cmp_lt_u32 s{S_SEG}, 64
    s_cbranch_scc1 {lp}
    s_waitcnt vmcnt(0)
    s_barrier
    """)
    fin = a.label("Lt1")
    a(f"s_cmp_lg_u32 s{S_W}, 0\ns_cbranch_scc1 {fin}")
    for sg in (62, 63):
        a(f"s_add_u32 s{S_A+1}, s{S_B+6}, {sg*512}\ns_mov_b32 s{S_SEG}, {sg}")
        signal(a, S_A+1, stage=2)
    a(f"{fin}:\ns_waitcnt vmcnt(0)")

def load_tiles_inplace(a, srd, row_stride, s_base, ntile_outer, ntile_inner, outer_step, inner_steps, lds0):
    lp = a.label("Lti"); done = a.label("Lti"); lp2 = a.label("Lti"); d2 = a.label("Lti")
    a(f"""
    v_and_b32 v1, 63, v0
    v_lshrrev_b32 v2, 2, v1            ; row (0..15)
    v_and_b32 v3, 3, v1                ; granule (0..3)
    v_mul_u32_u24 v2, {row_stride}, v2
    v_lshlrev_b32 v3, 4, v3
    v_add_u32 v3, v2, v3
    s_mov_b32 s{S_A+4}, s{S_W}
    {lp}:
    s_cmp_ge_u32 s{S_A+4}, {ntile_outer}
    s_cbranch_scc1 {done}
    s_mul_i32 s{S_A+5}, s{S_A+4}, {ntile_inner*1024}
    s_add_u32 s{S_A+5}, s{S_A+5}, {lds0}
    s_mul_i32 s{S_A+6}, s{S_A+4}, {outer_step}
    s_add_u32 s{S_A+6}, s{S_A+6}, s{s_base}
    """)
    for i in range(ntile_inner):
        a(f"s_mov_b32 m0, s{S_A+5}")
        a(f"s_add_u32 s{S_A+5}, s{S_A+5}, 1024")
        a(f"s_add_u32 s{S_A+7}, s{S_A+6}, {inner_steps[i]}")
        a(f"buffer_load_dwordx4 v3, {srd}, s{S_A+7} offen nt lds")
    a(f"""s_add_u32 s{S_A+4}, s{S_A+4}, 4
    s_branch {lp}
    {done}:
    v_lshrrev_b32 v4, 4, v1
    v_lshrrev_b32 v5, 2, v1
    v_and_b32 v5, 3, v5
    v_and_b32 v6, 3, v1
    v_lshrrev_b32 v7, 1, v4
    v_lshlrev_b32 v7, 2, v7
    v_add_u32 v7, v7, v5               ; row
    v_lshlrev_b32 v7, 6, v7
    v_and_b32 v8, 1, v4
    v_lshlrev_b32 v8, 5, v8
    v_lshlrev_b32 v6, 3, v6            ; c'*8
    v_add3_u32 v7, v7, v8, v6
    v_lshlrev_b32 v8, 4, v1            ; lane*16
    s_waitcnt vmcnt(0)
    s_mov_b32 s{S_A+4}, s{S_W}
    {lp2}:
    s_cmp_ge_u32 s{S_A+4}, {ntile_outer}
    s_cbranch_scc1 {d2}
    s_mul_i32 s{S_A+5}, s{S_A+4}, {ntile_inner*1024}
    s_add_u32 s{S_A+5}, s{S_A+5}, {lds0}
    v_add_u32 v9, s{S_A+5}, v7
    v_add_u32 v10, s{S_A+5}, v8
    """)
    for i in range(ntile_inner):
        r = 16 + 4*(i % 8)
        a(f"ds_read_b64_tr_b16 {v2(r)}, v9 offset:{i*1024}")
        a(f"ds_read_b64_tr_b16 {v2(r+2)}, v9 offset:{i*1024+512}")
        if i % 8 == 7 or i == ntile_inner-1:
            a("s_waitcnt lgkmcnt(0)")
            for k in range(i - (i % 8), i+1):
                a(f"ds_write_b128 v10, {v4(16+4*(k % 8))} offset:{k*1024}")
            a("s_waitcnt lgkmcnt(0)")
    a(f"""s_add_u32 s{S_A+4}, s{S_A+4}, 4
    s_branch {lp2}
    {d2}:
    s_barrier
    """)

def role_alpha(a, L_fail):
    h = S_IDX
    make_srd(a, S_TMP, KA_WO, 4096*1152)
    a(f"s_mul_i32 s{S_B}, s{h}, {128*1152}")
    load_tiles_inplace(a, TMPR, 1152, S_B, 18, 8, 64, [(16*k)*1152 for k in range(8)], 0)
    QF = 16
    KR = 48
    SX = 80
    SM = 96
    KM = 112
    P0 = 144; P1 = 148; PM = 152
    OB = 156
    OA = 188
    VMF = 204
    ACC = [220, 236]
    RING = 0
    a(f"""
    v_and_b32 v1, 63, v0
    v_lshlrev_b32 v2, 4, v1                 ; lane*16
    v_and_b32 v3, 31, v1
    v_lshrrev_b32 v4, 5, v1                 ; hi
    v_and_b32 v5, 7, v3
    v_lshlrev_b32 v6, 4, v4
    v_add3_u32 v5, v5, v6, 8
    v_lshlrev_b32 v5, 4, v5
    v_and_b32 v6, 15, v3
    v_lshlrev_b32 v7, 5, v4
    v_add_u32 v6, v6, v7
    v_lshlrev_b32 v6, 4, v6
    v_lshrrev_b32 v7, 4, v3
    v_lshlrev_b32 v7, 3, v7
    v_add_u32 v6, v6, v7
    v_lshrrev_b32 v7, 2, v3
    v_mul_u32_u24 v7, 4608, v7
    v_lshlrev_b32 v8, 6, v4
    v_and_b32 v9, 3, v3
    v_lshlrev_b32 v9, 4, v9
    v_add3_u32 v7, v7, v8, v9               ; v7
    v_lshlrev_b32 v8, 2, v4
    v_sub_u32 v8, v3, v8
    s_mov_b32 s{S_B+1}, {f2h(0.08838834764831845*1.4426950408889634):#x}
    s_mov_b32 s{S_B+2}, 0xff800000          ; -inf
    """)
    wait_init(a, L_fail)
    lp = a.label("Lal"); done = a.label("Lal")
    a(f"""s_mov_b32 s{S_SEG}, s{S_W}
    {lp}:
    s_cmp_ge_u32 s{S_SEG}, {NA1[0]}
    s_cbranch_scc1 {done}
    s_lshl_b32 s{S_B+3}, s{S_SEG}, 5
    s_add_u32 s{S_B+3}, s{S_B+3}, s{h}       ; seg*32+h
    s_lshl_b32 s{S_B+4}, s{S_B+3}, 13        ; *8192
    s_lshl_b32 s{S_B+5}, s{S_B+3}, 12        ; *4096
    """)
    a(f"s_lshl_b32 s{S_B+14}, s{S_B+3}, 4")
    a(f"s_add_u32 s{S_B+6}, s{S_B+14}, {FG_QKV}"); wait_flags(a, S_B+6, 0, 3, L_fail, vt=14, sleep=ASLEEP[0])
    a(f"s_add_u32 s{S_B+7}, s{S_B+4}, {WS_QF}\ns_add_u32 s{S_B+8}, s{S_B+7}, 4096")
    a(f"s_add_u32 s{S_B+9}, s{S_B+4}, {WS_KF}\ns_add_u32 s{S_B+10}, s{S_B+9}, 4096")
    for k in range(8):
        a(f"buffer_load_dwordx4 {v4(QF+4*k)}, v2, {WSR}, s{S_B+7+(k//4)} offen offset:{(k%4)*1024} sc1")
    for k in range(8):
        a(f"buffer_load_dwordx4 {v4(KR+4*k)}, v2, {WSR}, s{S_B+9+(k//4)} offen offset:{(k%4)*1024} sc1")
    for k in range(8):
        a(f"s_waitcnt vmcnt({7-k})" if False else "")
    a("s_waitcnt vmcnt(0)")
    for k in range(8):
        a(f"v_mfma_f32_32x32x16_bf16 v[{SX}:{SX+15}], {v4(KR+4*k)}, {v4(QF+4*k)}, " + ("0" if k == 0 else f"v[{SX}:{SX+15}]"))
    a(f"s_add_u32 s{S_B+9}, s{S_B+4}, {WS_VF}\ns_add_u32 s{S_B+10}, s{S_B+9}, 4096")
    a("s_nop 7")
    for k in range(8):
        a(f"buffer_load_dwordx4 {v4(KR+4*k)}, v2, {WSR}, s{S_B+9+(k//4)} offen offset:{(k%4)*1024} sc1")
    a(f"s_add_u32 s{S_B+6}, s{S_B+14}, {FG_M}"); wait_flags(a, S_B+6, 0, 1, L_fail, vt=14, sleep=ASLEEP[0])
    a(f"s_add_u32 s{S_B+11}, s{S_B+5}, {WS_KM}\ns_add_u32 s{S_B+12}, s{S_B+5}, {WS_VM}")
    for k in range(8):
        a(f"buffer_load_dwordx4 {v4(KM+4*k)}, v5, {WSR}, s{S_B+11} offen offset:{(k>>1)*1024+(k&1)*512} sc1")
    for w2 in range(4):
        a(f"buffer_load_dword v{VMF+4*w2}, v6, {WSR}, s{S_B+12} offen offset:{w2*1024} sc1")
        a(f"buffer_load_dword v{VMF+4*w2+1}, v6, {WSR}, s{S_B+12} offen offset:{w2*1024+256} sc1")
        a(f"v_mov_b32 v{VMF+4*w2+2}, 0\nv_mov_b32 v{VMF+4*w2+3}, 0")
    a("s_waitcnt vmcnt(8)")
    for k in range(8):
        a(f"v_mfma_f32_32x32x16_bf16 v[{SM}:{SM+15}], {v4(KM+4*k)}, {v4(QF+4*k)}, " + ("0" if k == 0 else f"v[{SM}:{SM+15}]"))
    for r in range(16):
        kk = 8*(r >> 2) + (r & 3)
        a(f"v_cmp_le_i32 vcc, {kk}, v8")
        a("s_nop 1" if r == 0 else "s_nop 0")
        a(f"v_mov_b32 v10, s{S_B+2}")
        a(f"v_cndmask_b32 v{SX+r}, v10, v{SX+r}, vcc")
    a("s_nop 7\ns_nop 3")
    a(f"v_max3_f32 v10, v{SX}, v{SX+1}, v{SX+2}")
    for r in range(3, 15, 2):
        a(f"v_max3_f32 v10, v10, v{SX+r}, v{SX+r+1}")
    a(f"v_max3_f32 v10, v10, v{SX+15}, v{SM}")
    a(f"v_max3_f32 v10, v10, v{SM+1}, v{SM+2}")
    a(f"v_max_f32 v10, v10, v{SM+3}")
    a("v_mov_b32 v11, v10\ns_nop 1\nv_permlane32_swap_b32 v10, v11\nv_max_f32 v10, v10, v11")
    a(f"v_mul_f32 v10, s{S_B+1}, v10")
    for r in list(range(SX, SX+16)) + list(range(SM, SM+4)):
        a(f"v_fma_f32 v{r}, v{r}, s{S_B+1}, -v10")
        a(f"v_exp_f32 v{r}, v{r}")
    a("s_nop 0")
    a(f"v_add_f32 v11, v{SX}, v{SX+1}")
    for r in list(range(SX+2, SX+16)) + list(range(SM, SM+4)):
        a(f"v_add_f32 v11, v11, v{r}")
    a("v_mov_b32 v12, v11\ns_nop 1\nv_permlane32_swap_b32 v11, v12\nv_add_f32 v11, v11, v12")
    a("v_rcp_f32 v11, v11\ns_nop 0")
    for r in list(range(SX, SX+16)) + list(range(SM, SM+4)):
        a(f"v_mul_f32 v{r}, v{r}, v11")
    for v, P in ((0, P0), (1, P1)):
        a(f"v_cvt_pk_bf16_f32 v{P}, v{SX+4*v}, v{SX+4*v+1}")
        a(f"v_cvt_pk_bf16_f32 v{P+1}, v{SX+4*v+2}, v{SX+4*v+3}")
        a(f"v_cvt_pk_bf16_f32 v{P+2}, v{SX+4*v+8}, v{SX+4*v+9}")
        a(f"v_cvt_pk_bf16_f32 v{P+3}, v{SX+4*v+10}, v{SX+4*v+11}")
    a(f"v_cvt_pk_bf16_f32 v{PM}, v{SM}, v{SM+1}")
    a(f"v_cvt_pk_bf16_f32 v{PM+1}, v{SM+2}, v{SM+3}")
    a(f"v_mov_b32 v{PM+2}, 0\nv_mov_b32 v{PM+3}, 0")
    a("s_waitcnt vmcnt(0)")
    a("s_nop 1")
    for w2 in range(4):
        a(f"v_mfma_f32_32x32x16_bf16 v[{OA}:{OA+15}], {v4(KR+8*w2)}, {v4(P0)}, 0")
        a(f"v_mfma_f32_32x32x16_bf16 v[{OA}:{OA+15}], {v4(KR+8*w2+4)}, {v4(P1)}, v[{OA}:{OA+15}]")
        a(f"v_mfma_f32_32x32x16_bf16 v[{OA}:{OA+15}], {v4(VMF+4*w2)}, {v4(PM)}, v[{OA}:{OA+15}]")
        a("s_nop 7\ns_nop 3")
        for u in range(2):
            for k in range(4):
                a(f"v_cvt_pk_bf16_f32 v{OB+8*w2+4*u+k}, v{OA+8*u+2*k}, v{OA+8*u+2*k+1}")
        a("s_nop 3")
    a(f"s_mul_i32 s{S_B+13}, s{S_B+3}, {SEGB}\ns_add_u32 s{S_B+13}, s{S_B+13}, {WS_PA}")
    a("v_mov_b32 v13, v2")
    n = 144
    for i in range(7):
        a(f"ds_read_b128 a[{4*(i%8)}:{4*(i%8)+3}], v13 offset:{i*1024}")
    base = 0
    for i in range(n):
        ct, ks = i // 8, i % 8
        acc = ACC[ct % 2]
        a(f"s_waitcnt lgkmcnt({min(6, n-1-i)})")
        a(f"v_mfma_f32_32x32x16_bf16 v[{acc}:{acc+15}], a[{4*(i%8)}:{4*(i%8)+3}], {v4(OB+4*ks)}, " + ("0" if ks == 0 else f"v[{acc}:{acc+15}]"))
        j = i + 7
        if j < n:
            off = j*1024 - base
            if off > 65535 - 1024:
                a(f"v_add_u32 v13, 57344, v13"); base += 57344; off = j*1024 - base
            a(f"ds_read_b128 a[{4*(j%8)}:{4*(j%8)+3}], v13 offset:{off}")
        if ks == 3 and ct >= 1 or i == n-1:
            pcs = [ct-1] if i != n-1 else [ct]
            if i == n-1: a("s_nop 7\ns_nop 3")
            for c2 in pcs:
                ac = ACC[c2 % 2]
                for u in range(2):
                    for k in range(4):
                        a(f"v_cvt_pk_bf16_f32 v{QF+4*u+k}, v{ac+8*u+2*k}, v{ac+8*u+2*k+1}")
                for u in range(2):
                    a(f"buffer_store_dwordx4 {v4(QF+4*u)}, v7, {WSR}, s{S_B+13} offen offset:{u*128} sc1")
                a(f"s_add_u32 s{S_B+13}, s{S_B+13}, 256")
                a("s_nop 1")
    a("s_waitcnt vmcnt(0)")
    flag_addr(a, S_B+6, FG_PA, S_SEG, 128, h, 4)
    signal(a, S_B+6, vt=14, stage=4)
    a(f"""s_add_u32 s{S_SEG}, s{S_SEG}, 4
    s_branch {lp}
    {done}:
    s_waitcnt vmcnt(0)
    """)

def role_reduce(a, L_fail, final, npar=2):
    NP = 36 if final else 32
    PSRC = WS_PB if final else WS_PA
    EXTRA = WS_H if final else WS_XP
    ngrp = NP // 4
    if final: make_srd(a, S_IO, KA_OUT, 2048*1152)
    SEL = 16
    D = 24
    LD = 48
    a(f"""
    s_and_b32 s{S_B}, s{S_IDX}, 7             ; tg
    s_lshr_b32 s{S_B+1}, s{S_IDX}, 3          ; parity
    v_and_b32 v1, 63, v0
    v_and_b32 v2, 15, v1                      ; n / m
    v_lshrrev_b32 v3, 4, v1                   ; g
    v_mul_u32_u24 v4, {SEGB}, v3
    v_lshlrev_b32 v5, 4, v2
    s_mul_i32 s{S_B+2}, s{S_B}, 4608
    v_add3_u32 v4, v4, v5, s{S_B+2}           ; v4
    v_add_u32 v6, s{S_B+2}, v5
    v_lshrrev_b32 v7, 1, v2
    v_and_b32 v8, 1, v2
    v_mov_b32 v9, 0x3f80
    v_mov_b32 v10, 0x3f800000
    v_cmp_eq_u32 vcc, 1, v8
    s_nop 1
    v_cndmask_b32 v9, v9, v10, vcc
    """)
    for j in range(4):
        a(f"v_cmp_eq_u32 vcc, {j}, v7\ns_nop 1\nv_cndmask_b32 v{SEL+j}, 0, v9, vcc")
    a(f"""
    v_and_b32 v7, 3, v2                       ; tt
    v_bfe_u32 v8, v2, 2, 1                    ; hi
    v_lshrrev_b32 v9, 3, v2                   ; u
    ; H block offset: tg*4608 + (16bg + n)*16 + g''*8
    v_lshlrev_b32 v10, 3, v3
    v_add_u32 v11, v6, v10                    ; v11 = H store offset (bg adds 256)
    ; HN offset: p*1024 + hi*512 + token*16 + g''*8 ; token = 4tg+tt ; (bg adds 2048)
    v_lshlrev_b32 v12, 10, v9
    v_lshlrev_b32 v13, 9, v8
    v_add3_u32 v12, v12, v13, v10
    v_lshlrev_b32 v13, 4, v7
    s_lshl_b32 s{S_B+3}, s{S_B}, 6
    v_add3_u32 v12, v12, v13, s{S_B+3}        ; v12
    ; out offset: token*1152 + (32bg + 16u + 8g'' + 4hi)*2 ; (bg adds 64)
    v_lshlrev_b32 v13, 2, 0
    s_lshl_b32 s{S_B+3}, s{S_B}, 2
    v_add_u32 v13, s{S_B+3}, v7               ; token in segment
    v_mul_u32_u24 v13, 1152, v13
    v_lshlrev_b32 v14, 5, v9
    v_lshlrev_b32 v15, 4, v3
    v_add3_u32 v13, v13, v14, v15
    v_lshlrev_b32 v14, 3, v8
    v_add_u32 v13, v13, v14                   ; v13
    """.replace("v_lshlrev_b32 v13, 2, 0\n", ""))
    wait_init(a, L_fail)
    lp = a.label("Lrd"); done = a.label("Lrd")
    a(f"""s_mov_b32 s{S_SEG}, s{S_B+1}
    {lp}:
    s_cmp_ge_u32 s{S_SEG}, 64
    s_cbranch_scc1 {done}""")
    skw = a.label("Lrd")
    a(f"s_cmp_lg_u32 s{S_W}, 0\ns_cbranch_scc1 {skw}")
    if final:
        flag_addr(a, S_B+4, FG_PB, S_SEG, 256); wait_flags(a, S_B+4, 0, 36, L_fail)
        flag_addr(a, S_B+4, FG_H, S_SEG, 128); wait_flags(a, S_B+4, 0, 8, L_fail)
    else:
        flag_addr(a, S_B+4, FG_PA, S_SEG, 128); wait_flags(a, S_B+4, 0, 32, L_fail)
        flag_addr(a, S_B+4, FG_XN, S_SEG, 64); wait_flags(a, S_B+4, 0, 1, L_fail)
    a(f"{skw}:\ns_barrier")
    a(f"""s_mul_i32 s{S_B+5}, s{S_SEG}, {NP*SEGB}
    s_add_u32 s{S_B+5}, s{S_B+5}, {PSRC}
    s_mul_i32 s{S_B+6}, s{S_SEG}, {SEGB}
    s_add_u32 s{S_B+7}, s{S_B+6}, {EXTRA}
    s_lshl_b32 s{S_B+8}, s{S_W}, 8
    s_add_u32 s{S_B+5}, s{S_B+5}, s{S_B+8}
    s_add_u32 s{S_B+7}, s{S_B+7}, s{S_B+8}
    """)
    def issue(i, buf):
        r = buf
        for k in range(4): a(f"v_mov_b32 v{r+k}, 0")
        a("s_mov_b64 exec, 0xffff")
        a(f"s_add_u32 s{S_B+9}, s{S_B+7}, {i*1024}")
        a(f"buffer_load_dwordx4 {v4(r)}, v6, {WSR}, s{S_B+9} offen sc1")
        a("s_mov_b64 exec, -1")
        a(f"s_add_u32 s{S_B+9}, s{S_B+5}, {i*1024}")
        for q in range(ngrp):
            a(f"buffer_load_dwordx4 {v4(r+4+4*q)}, v4, {WSR}, s{S_B+9} offen sc1")
            if q < ngrp-1: a(f"s_add_u32 s{S_B+9}, s{S_B+9}, {4*SEGB}")
    def consume(i, buf, pending_after):
        nl = ngrp + 1
        for q in range(nl):
            a(f"s_waitcnt vmcnt({min(63, nl-1-q + pending_after)})")
            a(f"v_mfma_f32_16x16x32_bf16 {v4(D+4*i)}, {v4(SEL)}, {v4(buf+4*q)}, " + ("0" if q == 0 else v4(D+4*i)))
    bufs = [LD, LD+44]
    nl = ngrp + 1
    skip5 = a.label("Lrd")
    issue(0, bufs[0]); issue(1, bufs[1])
    consume(0, bufs[0], nl); issue(2, bufs[0])
    consume(1, bufs[1], nl); issue(3, bufs[1])
    consume(2, bufs[0], nl)
    l5 = a.label("Lrd")
    a(f"s_cmp_lt_u32 s{S_W}, 2\ns_cbranch_scc0 {skip5}")
    issue(4, bufs[0]); consume(3, bufs[1], nl); consume(4, bufs[0], 0)
    a(f"s_branch {l5}\n{skip5}:")
    consume(3, bufs[1], 0)
    for k in range(4): a(f"v_mov_b32 v{D+16+k}, 0")
    a(f"{l5}:")
    a("s_nop 7")
    for i in range(5):
        a(f"v_cvt_pk_bf16_f32 v{LD+2*i}, v{D+4*i}, v{D+4*i+1}")
        a(f"v_cvt_pk_bf16_f32 v{LD+2*i+1}, v{D+4*i+2}, v{D+4*i+3}")
    if final:
        a(f"s_mul_i32 s{S_B+10}, s{S_SEG}, {32*1152}")
        a(f"s_lshl_b32 s{S_B+11}, s{S_W}, 6\ns_add_u32 s{S_B+10}, s{S_B+10}, s{S_B+11}")
        a("s_mov_b32 exec_hi, 0")
        for i in range(4):
            a(f"buffer_store_dwordx2 {v2(LD+2*i)}, v13, {IOR}, s{S_B+10} offen offset:{i*256} {OUTF[0]}")
        sk = a.label("Lrd")
        a(f"s_cmp_lt_u32 s{S_W}, 2\ns_cbranch_scc0 {sk}")
        a(f"buffer_store_dwordx2 {v2(LD+8)}, v13, {IOR}, s{S_B+10} offen offset:{4*256} {OUTF[0]}")
        a(f"{sk}:\ns_mov_b64 exec, -1")
        if REPORT[0]:
            a("s_waitcnt vmcnt(0)"); stamp_max(a, 3, 250)
    else:
        a(f"s_add_u32 s{S_B+10}, s{S_B+6}, {WS_H}\ns_add_u32 s{S_B+10}, s{S_B+10}, s{S_B+8}")
        a("s_mov_b32 exec_hi, 0")
        for i in range(4):
            a(f"buffer_store_dwordx2 {v2(LD+2*i)}, v11, {WSR}, s{S_B+10} offen offset:{i*1024} sc1")
        sk = a.label("Lrd")
        a(f"s_cmp_lt_u32 s{S_W}, 2\ns_cbranch_scc0 {sk}")
        a(f"s_add_u32 s{S_B+11}, s{S_B+10}, 4096")
        a(f"buffer_store_dwordx2 {v2(LD+8)}, v11, {WSR}, s{S_B+11} offen sc1")
        a(f"{sk}:\ns_mov_b64 exec, -1")
        for i in range(5):
            for k in range(2):
                a(f"v_lshlrev_b32 v{D+4*i+2*k}, 16, v{LD+2*i+k}")
                a(f"v_and_b32 v{D+4*i+2*k+1}, 0xffff0000, v{LD+2*i+k}")
        def allsum(r):
            a("s_nop 1")
            a(f"v_add_f32_dpp v{r}, v{r}, v{r} row_ror:4 row_mask:0xf bank_mask:0xf")
            a("s_nop 1")
            a(f"v_add_f32_dpp v{r}, v{r}, v{r} row_ror:8 row_mask:0xf bank_mask:0xf")
            a(f"v_mov_b32 v{r+1}, v{r}\ns_nop 1\nv_permlane16_swap_b32 v{r}, v{r+1}\nv_add_f32 v{r}, v{r}, v{r+1}")
        a(f"v_and_b32 v20, 3, v1\nv_lshlrev_b32 v20, 2, v20\ns_lshl_b32 s{S_B+11}, s{S_W}, 4\nv_add_u32 v21, s{S_B+11}, v20")
        a(f"v_add_f32 v22, v{D}, v{D+1}")
        for k in range(2, 20): a(f"v_add_f32 v22, v22, v{D+k}")
        allsum(22)
        a("s_mov_b64 exec, 0xf\nds_write_b32 v21, v22\ns_mov_b64 exec, -1\ns_waitcnt lgkmcnt(0)\ns_barrier")
        for w2 in range(4): a(f"ds_read_b32 v{44+w2}, v20 offset:{w2*16}")
        a("s_waitcnt lgkmcnt(0)\nv_add_f32 v44, v44, v45\nv_add_f32 v46, v46, v47\nv_add_f32 v44, v44, v46")
        a(f"v_mul_f32 v44, {f2h(1.0/576):#x}, v44")
        a("v_mov_b32 v22, 0")
        for k in range(16):
            a(f"v_sub_f32 v23, v{D+k}, v44\nv_fmac_f32 v22, v23, v23")
        sk2 = a.label("Lrd")
        a(f"s_cmp_lt_u32 s{S_W}, 2\ns_cbranch_scc0 {sk2}")
        for k in range(16, 20):
            a(f"v_sub_f32 v23, v{D+k}, v44\nv_fmac_f32 v22, v23, v23")
        a(f"{sk2}:")
        allsum(22)
        a("s_mov_b64 exec, 0xf\nds_write_b32 v21, v22 offset:64\ns_mov_b64 exec, -1\ns_waitcnt lgkmcnt(0)\ns_barrier")
        for w2 in range(4): a(f"ds_read_b32 v{45+w2}, v20 offset:{64+w2*16}")
        a("s_waitcnt lgkmcnt(0)\nv_add_f32 v45, v45, v46\nv_add_f32 v47, v47, v48\nv_add_f32 v45, v45, v47")
        a(f"v_mul_f32 v45, {f2h(1.0/576):#x}, v45")
        round_bf16(a, 45, 45, 46)
        a(f"v_add_f32 v45, {f2h(1e-5):#x}, v45")
        round_bf16(a, 45, 45, 46)
        a("v_sqrt_f32 v45, v45\ns_nop 0")
        round_bf16(a, 45, 45, 46)
        a("v_rcp_f32 v45, v45")
        round_bf16(a, 44, 44, 46)
        for i in range(5):
            for k in range(2):
                r = D+4*i+2*k
                a(f"v_sub_f32 v46, v{r}, v44\nv_sub_f32 v47, v{r+1}, v44")
                a("v_cvt_pk_bf16_f32 v46, v46, v47")
                a("v_and_b32 v47, 0xffff0000, v46\nv_lshlrev_b32 v46, 16, v46")
                a("v_mul_f32 v46, v46, v45\nv_mul_f32 v47, v47, v45")
                a(f"v_cvt_pk_bf16_f32 v{LD+16+2*i+k}, v46, v47")
        a(f"s_add_u32 s{S_B+10}, s{S_B+6}, {WS_HN}\ns_lshl_b32 s{S_B+11}, s{S_W}, 11\ns_add_u32 s{S_B+10}, s{S_B+10}, s{S_B+11}")
        a("s_mov_b32 exec_hi, 0")
        for i in range(4):
            a(f"buffer_store_dwordx2 {v2(LD+16+2*i)}, v12, {WSR}, s{S_B+10} offen sc1")
            a(f"s_add_u32 s{S_B+10}, s{S_B+10}, 8192")
        sk = a.label("Lrd")
        a(f"s_cmp_lt_u32 s{S_W}, 2\ns_cbranch_scc0 {sk}")
        a(f"buffer_store_dwordx2 {v2(LD+16+8)}, v12, {WSR}, s{S_B+10} offen sc1")
        a(f"{sk}:\ns_mov_b64 exec, -1")
        a("s_waitcnt vmcnt(0)\ns_barrier")
        sk = a.label("Lrd")
        a(f"s_cmp_lg_u32 s{S_W}, 0\ns_cbranch_scc1 {sk}")
        flag_addr(a, S_B+4, FG_H, S_SEG, 128, S_B, 4)
        signal(a, S_B+4, stage=5)
        a(f"{sk}:")
    a(f"""s_add_u32 s{S_SEG}, s{S_SEG}, {npar}
    s_branch {lp}
    {done}:
    s_waitcnt vmcnt(0)
    """)

def role_ffn(a, L_fail, first=0, s0=64):
    W1 = 64
    ACC1 = 16
    RING = 32
    HID = 208
    make_srd(a, S_TMP, KA_W1, 576*9216)
    a(f"s_lshl_b32 s{S_B}, s{S_IDX}, 8")
    load_wT_frags(a, TMPR, 9216, S_B, 576, W1, kmap='pc')
    make_srd(a, S_TMP, KA_W2, 4608*1152)
    a(f"s_mul_i32 s{S_B}, s{S_IDX}, {128*1152}")
    load_tiles_inplace(a, TMPR, 1152, S_B, 18, 8, 64, [(16*k)*1152 for k in range(8)], 0)
    a(f"""v_and_b32 v1, 63, v0
    v_lshlrev_b32 v1, 4, v1
    s_lshl_b32 s{S_B+1}, s{S_W}, 13
    v_add_u32 v2, s{S_B+1}, v1""")
    sk = a.label("Lff")
    for i in range(5):
        if i == 4: a(f"s_cmp_lt_u32 s{S_W}, 2\ns_cbranch_scc0 {sk}")
        for ks in range(8):
            a(f"ds_read_b128 a[{(i*8+ks)*4}:{(i*8+ks)*4+3}], v2 offset:{ks*1024}")
        a("s_waitcnt lgkmcnt(0)")
        a("v_add_u32 v2, 32768, v2")
    a(f"{sk}:\ns_barrier")
    XCH = 73728
    a(f"""
    v_and_b32 v3, 63, v0
    v_and_b32 v4, 31, v3                    ; token n
    v_lshrrev_b32 v5, 5, v3                 ; hi
    v_lshrrev_b32 v7, 2, v4
    v_mul_u32_u24 v7, 4608, v7
    v_lshlrev_b32 v8, 6, v5
    v_and_b32 v9, 3, v4
    v_lshlrev_b32 v9, 4, v9
    v_add3_u32 v7, v7, v8, v9
    v_add_u32 v8, {XCH}, v1
    s_lshl_b32 s{S_B+1}, s{S_W}, 11
    v_add_u32 v9, s{S_B+1}, v8
    """)
    DEC = XCH + 8192
    S_PEND = S_B+11
    wait_init(a, L_fail)
    S_STR = S_B+15
    a(f"s_mov_b32 s{S_SEG}, {first}\ns_mov_b32 s{S_B+7}, {FG_H + first*128}\ns_mov_b32 s{S_PEND}, 0")
    wg_wait_flags(a, S_B+7, 0, 8, L_fail, sleep=1)
    a(f"s_mov_b32 s{S_B+8}, {WS_HN + first*SEGB}\ns_mov_b32 s{S_B+9}, 0")
    dma_seg(a, S_B+8, S_B+9)
    a("s_waitcnt vmcnt(0)")
    lp = a.label("Lff")
    a(f"""{lp}:
    s_cmp_ge_u32 s{S_SEG}, {min(s0, 64) if not first else 0}
    s_cselect_b32 s{S_STR}, 2, 1
    s_waitcnt vmcnt(8)
    s_barrier
    v_add_u32 v2, s{S_B+9}, v1""")
    for k in range(8): a(f"ds_read_b128 {v4(RING+4*k)}, v2 offset:{k*1024}")
    for t in range(36):
        sl = RING + 4*(t % 8)
        a(f"s_waitcnt lgkmcnt({7 if t == 0 else min(6, 35 - t)})")
        a(f"v_mfma_f32_32x32x16_bf16 v[{ACC1}:{ACC1+15}], {v4(W1+4*t)}, {v4(sl)}, " + ("0" if t == 0 else f"v[{ACC1}:{ACC1+15}]"))
        if t >= 1 and t + 7 < 36:
            a(f"ds_read_b128 {v4(RING+4*((t+7) % 8))}, v2 offset:{(t+7)*1024}")
        if t == 12:
            a(f"""s_lshl_b32 s{S_B+12}, s{S_STR}, 7
            s_add_u32 s{S_B+12}, s{S_B+12}, s{S_B+7}
            s_mov_b64 exec, 0xff
            v_lshrrev_b32 v13, 2, v1
            buffer_load_dword v11, v13, {WSR}, s{S_B+12} offen sc1
            s_mov_b64 exec, -1""")
    a("s_nop 7\ns_nop 3")
    for r_ in range(16): a(f"v_max_f32 v{ACC1+r_}, 0, v{ACC1+r_}")
    for u in range(2):
        for k in range(4):
            a(f"v_cvt_pk_bf16_f32 v{RING+4*u+k}, v{ACC1+8*u+2*k}, v{ACC1+8*u+2*k+1}")
    a(f"ds_write_b128 v9, {v4(RING)}\nds_write_b128 v9, {v4(RING+4)} offset:1024")
    a("s_waitcnt vmcnt(0)")
    nd = a.label("Lff")
    a(f"""s_cmp_lg_u32 s{S_W}, 0
    s_cbranch_scc1 {nd}
    s_mov_b64 exec, 0xff
    v_cmp_eq_u32 vcc, 0, v11
    s_mov_b64 exec, -1
    s_cmp_eq_u64 vcc, 0
    s_cselect_b32 s{S_A+1}, 1, 0
    s_add_u32 s{S_A+2}, s{S_SEG}, s{S_STR}
    s_cmp_lt_u32 s{S_A+2}, 64
    s_cselect_b32 s{S_A+1}, s{S_A+1}, 0
    v_mov_b32 v10, s{S_A+1}
    v_mov_b32 v12, {DEC}
    ds_write_b32 v12, v10
    {nd}:
    s_waitcnt lgkmcnt(0)
    s_barrier""")
    for k in range(8): a(f"ds_read_b128 {v4(HID+4*k)}, v8 offset:{k*1024}")
    a(f"v_mov_b32 v12, {DEC}\nds_read_b32 v10, v12")
    ns = a.label("Lff"); npf = a.label("Lff")
    a(f"""s_cmp_lg_u32 s{S_W}, 0
    s_cbranch_scc1 {ns}
    s_cmp_eq_u32 s{S_PEND}, 0
    s_cbranch_scc1 {ns}
    s_mov_b32 s{S_A+12}, s{S_SEG}
    s_sub_u32 s{S_SEG}, s{S_PEND}, 1""")
    flag_addr(a, S_A+1, FG_PB, S_SEG, 256, S_IDX, 4)
    signal(a, S_A+1, stage=6)
    a(f"""s_mov_b32 s{S_SEG}, s{S_A+12}
    {ns}:
    s_mov_b32 s{S_PEND}, 0
    s_waitcnt lgkmcnt(0)
    v_readfirstlane_b32 s{S_B+10}, v10
    s_cmp_eq_u32 s{S_B+10}, 0
    s_cbranch_scc1 {npf}
    s_mul_i32 s{S_B+12}, s{S_STR}, {SEGB}
    s_add_u32 s{S_B+8}, s{S_B+8}, s{S_B+12}
    s_xor_b32 s{S_B+12}, s{S_B+9}, {SEGB}""")
    dma_seg(a, S_B+8, S_B+12)
    a(f"{npf}:")
    a(f"""s_mul_i32 s{S_B+13}, s{S_SEG}, 36
    s_add_u32 s{S_B+13}, s{S_B+13}, s{S_IDX}
    s_mul_i32 s{S_B+13}, s{S_B+13}, {SEGB}
    s_add_u32 s{S_B+13}, s{S_B+13}, {WS_PB}
    s_lshl_b32 s{S_B+14}, s{S_W}, 8
    s_add_u32 s{S_B+13}, s{S_B+13}, s{S_B+14}""")
    AC2 = [ACC1, 240]
    def ffn2(i):
        ac = AC2[i % 2]
        for ks in range(8):
            a(f"v_mfma_f32_32x32x16_bf16 v[{ac}:{ac+15}], a[{(i*8+ks)*4}:{(i*8+ks)*4+3}], {v4(HID+4*ks)}, " + ("0" if ks == 0 else f"v[{ac}:{ac+15}]"))
    def epi(i):
        ac = AC2[i % 2]
        for u in range(2):
            for k in range(4):
                a(f"v_cvt_pk_bf16_f32 v{RING+8+8*(i%2)+4*u+k}, v{ac+8*u+2*k}, v{ac+8*u+2*k+1}")
        for u in range(2):
            a(f"buffer_store_dwordx4 {v4(RING+8+8*(i%2)+4*u)}, v7, {WSR}, s{S_B+13} offen offset:{u*128} sc1")
        a(f"s_add_u32 s{S_B+13}, s{S_B+13}, 1024")
    ffn2(0); ffn2(1); epi(0); ffn2(2); epi(1); ffn2(3); epi(2)
    sk4 = a.label("Lff"); e4 = a.label("Lff")
    a(f"s_cmp_lt_u32 s{S_W}, 2\ns_cbranch_scc0 {sk4}")
    ffn2(4); epi(3); a("s_nop 7\ns_nop 3"); epi(4)
    a(f"s_branch {e4}\n{sk4}:\ns_nop 7\ns_nop 3")
    epi(3)
    a(f"{e4}:")
    slow = a.label("Lff"); fin = a.label("Lff"); sk = a.label("Lff")
    a(f"""s_cmp_eq_u32 s{S_B+10}, 0
    s_cbranch_scc1 {slow}
    s_add_u32 s{S_PEND}, s{S_SEG}, 1
    s_add_u32 s{S_SEG}, s{S_SEG}, s{S_STR}
    s_lshl_b32 s{S_B+12}, s{S_STR}, 7
    s_add_u32 s{S_B+7}, s{S_B+7}, s{S_B+12}
    s_xor_b32 s{S_B+9}, s{S_B+9}, {SEGB}
    s_branch {lp}
    {slow}:
    s_waitcnt vmcnt(0)
    s_barrier
    s_cmp_lg_u32 s{S_W}, 0
    s_cbranch_scc1 {sk}""")
    flag_addr(a, S_A+1, FG_PB, S_SEG, 256, S_IDX, 4)
    signal(a, S_A+1, stage=6)
    a(f"""{sk}:
    s_add_u32 s{S_SEG}, s{S_SEG}, s{S_STR}
    s_cmp_lt_u32 s{S_SEG}, 64
    s_cbranch_scc0 {fin}
    s_lshl_b32 s{S_B+12}, s{S_STR}, 7
    s_add_u32 s{S_B+7}, s{S_B+7}, s{S_B+12}""")
    wg_wait_flags(a, S_B+7, 0, 8, L_fail, sleep=1)
    a(f"s_mul_i32 s{S_B+12}, s{S_STR}, {SEGB}\ns_add_u32 s{S_B+8}, s{S_B+8}, s{S_B+12}\ns_xor_b32 s{S_B+9}, s{S_B+9}, {SEGB}")
    dma_seg(a, S_B+8, S_B+9)
    a(f"""s_waitcnt vmcnt(0)
    s_branch {lp}
    {fin}:
    s_waitcnt vmcnt(0)
    """)

def role_alpha2(a, L_fail, one_seg_sgpr=None):
    h = S_IDX
    make_srd(a, S_TMP, KA_WO, 4096*1152)
    a(f"s_mul_i32 s{S_B}, s{h}, {128*1152}")
    load_tiles_inplace(a, TMPR, 1152, S_B, 18, 8, 64, [(16*k)*1152 for k in range(8)], 0)
    XA = 147456
    QF = 16
    KR = 48
    VR = 64
    SX = 80; SM = 96
    P0 = 112; P1 = 116; PM = 120
    VMF = 124
    OA = 128
    OB = 144
    ST = 176
    ACC = [192, 208]
    a(f"""
    v_and_b32 v1, 63, v0
    v_lshlrev_b32 v2, 4, v1                 ; lane*16
    v_and_b32 v3, 31, v1                    ; n
    v_lshrrev_b32 v4, 5, v1                 ; hi
    v_add_u32 v16, {XA}, v2
    v_mov_b32 v12, v16
    v_and_b32 v5, 7, v3
    v_lshlrev_b32 v6, 4, v4
    v_add3_u32 v5, v5, v6, 8
    v_lshlrev_b32 v5, 4, v5
    v_add_u32 v5, {XA}, v5
    v_and_b32 v6, 15, v3
    v_lshlrev_b32 v7, 5, v4
    v_add_u32 v6, v6, v7
    v_lshlrev_b32 v6, 4, v6
    v_lshrrev_b32 v7, 4, v3
    v_lshlrev_b32 v7, 3, v7
    v_add_u32 v6, v6, v7
    s_lshl_b32 s{S_B+15}, s{S_W}, 10
    v_add_u32 v6, s{S_B+15}, v6
    v_lshrrev_b32 v7, 2, v3
    v_mul_u32_u24 v7, 4608, v7
    v_lshlrev_b32 v8, 6, v4
    v_and_b32 v9, 3, v3
    v_lshlrev_b32 v9, 4, v9
    v_add3_u32 v7, v7, v8, v9
    v_lshlrev_b32 v8, 2, v4
    v_sub_u32 v8, v3, v8                    ; n - 4hi
    s_lshl_b32 s{S_B+15}, s{S_W}, 11
    v_add_u32 v9, s{S_B+15}, v12
    s_lshl_b32 s{S_B+15}, s{S_W}, 13
    v_add_u32 v13, s{S_B+15}, v2
    s_mov_b32 s{S_B+1}, {f2h(0.08838834764831845*1.4426950408889634):#x}
    s_mov_b32 s{S_B+2}, 0xff800000
    """)
    wait_init(a, L_fail)
    lp = a.label("Lal"); done = a.label("Lal")
    a(f"""s_mov_b32 s{S_SEG}, {('s%d' % one_seg_sgpr) if one_seg_sgpr else 0}
    {lp}:
    s_lshl_b32 s{S_B+3}, s{S_SEG}, 5
    s_add_u32 s{S_B+3}, s{S_B+3}, s{h}
    s_lshl_b32 s{S_B+4}, s{S_B+3}, 13
    s_lshl_b32 s{S_B+5}, s{S_B+3}, 12
    s_lshl_b32 s{S_B+14}, s{S_B+3}, 4
    s_add_u32 s{S_B+6}, s{S_B+14}, {FG_QKV}
    """)
    wg_wait_flags(a, S_B+6, 0, 3, L_fail)
    a(f"""s_lshl_b32 s{S_B+7}, s{S_W}, 11
    s_add_u32 s{S_B+8}, s{S_B+4}, s{S_B+7}          ; (seg,h) + w*2048
    s_add_u32 s{S_B+9}, s{S_B+7}, {XA}""")
    for mat, base, ldo in ((0, WS_QF, 0), (1, WS_KF, 8192)):
        for u in range(2):
            a(f"s_add_u32 s{S_B+10}, s{S_B+9}, {ldo + u*1024}\ns_mov_b32 m0, s{S_B+10}")
            a(f"s_add_u32 s{S_B+11}, s{S_B+8}, {base + u*1024}")
            a(f"buffer_load_dwordx4 v2, {WSR}, s{S_B+11} offen sc1 lds")
    a(f"s_add_u32 s{S_B+11}, s{S_B+8}, {WS_VF}")
    a(f"buffer_load_dwordx4 {v4(VR)}, v2, {WSR}, s{S_B+11} offen sc1")
    a(f"buffer_load_dwordx4 {v4(VR+4)}, v2, {WSR}, s{S_B+11} offen offset:1024 sc1")
    a("s_waitcnt vmcnt(2)\ns_barrier")
    for k in range(8): a(f"ds_read_b128 {v4(QF+4*k)}, v12 offset:{k*1024}")
    for k in range(3): a(f"ds_read_b128 {v4(KR+4*(k%4))}, v12 offset:{8192+k*1024}")
    for k in range(8):
        a(f"s_waitcnt lgkmcnt({min(2, 7-k)})")
        a(f"v_mfma_f32_32x32x16_bf16 v[{SX}:{SX+15}], {v4(KR+4*(k%4))}, {v4(QF+4*k)}, " + ("0" if k == 0 else f"v[{SX}:{SX+15}]"))
        if k + 3 < 8: a(f"ds_read_b128 {v4(KR+4*((k+3)%4))}, v12 offset:{8192+(k+3)*1024}")
    a(f"s_add_u32 s{S_B+6}, s{S_B+14}, {FG_M}")
    wg_wait_flags(a, S_B+6, 0, 1, L_fail)
    a(f"""s_lshl_b32 s{S_B+7}, s{S_W}, 10
    s_add_u32 s{S_B+10}, s{S_B+7}, {XA}
    s_mov_b32 m0, s{S_B+10}
    s_add_u32 s{S_B+11}, s{S_B+5}, s{S_B+7}
    s_add_u32 s{S_B+11}, s{S_B+11}, {WS_KM}
    buffer_load_dwordx4 v2, {WSR}, s{S_B+11} offen sc1 lds
    s_add_u32 s{S_B+12}, s{S_B+5}, {WS_VM}
    buffer_load_dword v{VMF}, v6, {WSR}, s{S_B+12} offen sc1
    buffer_load_dword v{VMF+1}, v6, {WSR}, s{S_B+12} offen offset:256 sc1
    v_mov_b32 v{VMF+2}, 0
    v_mov_b32 v{VMF+3}, 0
    """)
    for r in range(16):
        kk = 8*(r >> 2) + (r & 3)
        a(f"v_cmp_le_i32 vcc, {kk}, v8")
        a(f"v_mov_b32 v10, s{S_B+2}")
        a("s_nop 0")
        a(f"v_cndmask_b32 v{SX+r}, v10, v{SX+r}, vcc")
    a("s_waitcnt vmcnt(2)\ns_barrier")
    for k in range(3): a(f"ds_read_b128 {v4(KR+4*(k%4))}, v5 offset:{(k>>1)*1024+(k&1)*512}")
    for k in range(8):
        a(f"s_waitcnt lgkmcnt({min(2, 7-k)})")
        a(f"v_mfma_f32_32x32x16_bf16 v[{SM}:{SM+15}], {v4(KR+4*(k%4))}, {v4(QF+4*k)}, " + ("0" if k == 0 else f"v[{SM}:{SM+15}]"))
        if k + 3 < 8:
            j = k + 3
            a(f"ds_read_b128 {v4(KR+4*(j%4))}, v5 offset:{(j>>1)*1024+(j&1)*512}")
    a(f"v_max3_f32 v10, v{SX}, v{SX+1}, v{SX+2}")
    for r in range(3, 15, 2): a(f"v_max3_f32 v10, v10, v{SX+r}, v{SX+r+1}")
    a(f"v_max_f32 v10, v10, v{SX+15}")
    a("s_nop 3")
    a(f"v_max3_f32 v10, v10, v{SM}, v{SM+1}")
    a(f"v_max3_f32 v10, v10, v{SM+2}, v{SM+3}")
    a("v_mov_b32 v11, v10\ns_nop 1\nv_permlane32_swap_b32 v10, v11\nv_max_f32 v10, v10, v11")
    a(f"v_mul_f32 v10, s{S_B+1}, v10")
    regs = list(range(SX, SX+16)) + list(range(SM, SM+4))
    for r in regs: a(f"v_fma_f32 v{r}, v{r}, s{S_B+1}, -v10")
    for r in regs: a(f"v_exp_f32 v{r}, v{r}")
    a(f"s_nop 0\nv_add_f32 v11, v{SX}, v{SX+1}")
    a(f"v_add_f32 v14, v{SX+2}, v{SX+3}")
    for i, r in enumerate(regs[4:]): a(f"v_add_f32 v{11 if i % 2 == 0 else 14}, v{11 if i % 2 == 0 else 14}, v{r}")
    a("v_add_f32 v11, v11, v14")
    a("v_mov_b32 v14, v11\ns_nop 1\nv_permlane32_swap_b32 v11, v14\nv_add_f32 v11, v11, v14")
    a("v_rcp_f32 v14, v11\ns_nop 0")
    for r in range(0, 20, 2):
        rr = regs[r]
        a(f"v_pk_mul_f32 {v2(rr)}, {v2(rr)}, v[14:15] op_sel_hi:[1,0]")
    for v, P in ((0, P0), (1, P1)):
        a(f"v_cvt_pk_bf16_f32 v{P}, v{SX+4*v}, v{SX+4*v+1}")
        a(f"v_cvt_pk_bf16_f32 v{P+1}, v{SX+4*v+2}, v{SX+4*v+3}")
        a(f"v_cvt_pk_bf16_f32 v{P+2}, v{SX+4*v+8}, v{SX+4*v+9}")
        a(f"v_cvt_pk_bf16_f32 v{P+3}, v{SX+4*v+10}, v{SX+4*v+11}")
    a(f"v_cvt_pk_bf16_f32 v{PM}, v{SM}, v{SM+1}")
    a(f"v_cvt_pk_bf16_f32 v{PM+1}, v{SM+2}, v{SM+3}")
    a(f"v_mov_b32 v{PM+2}, 0\nv_mov_b32 v{PM+3}, 0")
    a("s_waitcnt vmcnt(0)\ns_nop 1")
    a(f"v_mfma_f32_32x32x16_bf16 v[{OA}:{OA+15}], {v4(VR)}, {v4(P0)}, 0")
    a(f"v_mfma_f32_32x32x16_bf16 v[{OA}:{OA+15}], {v4(VR+4)}, {v4(P1)}, v[{OA}:{OA+15}]")
    a(f"v_mfma_f32_32x32x16_bf16 v[{OA}:{OA+15}], {v4(VMF)}, {v4(PM)}, v[{OA}:{OA+15}]")
    for i in range(7): a(f"ds_read_b128 a[{4*i}:{4*i+3}], v13 offset:{i*1024}")
    a("s_nop 5")
    for u in range(2):
        for k in range(4):
            a(f"v_cvt_pk_bf16_f32 v{ST+4*u+k}, v{OA+8*u+2*k}, v{OA+8*u+2*k+1}")
    a(f"ds_write_b128 v9, {v4(ST)} offset:8192\nds_write_b128 v9, {v4(ST+4)} offset:{8192+1024}")
    a("s_waitcnt lgkmcnt(0)\ns_barrier")
    for k in range(8): a(f"ds_read_b128 {v4(OB+4*k)}, v12 offset:{8192+k*1024}")
    a(f"""s_mul_i32 s{S_B+13}, s{S_B+3}, {SEGB}
    s_add_u32 s{S_B+13}, s{S_B+13}, {WS_PA}
    s_lshl_b32 s{S_B+15}, s{S_W}, 8
    s_add_u32 s{S_B+13}, s{S_B+13}, s{S_B+15}
    s_waitcnt lgkmcnt(0)""")
    def gemm(ntiles):
        n = ntiles*8
        def off(j): return (j // 8)*32768 + (j % 8)*1024
        base = 0
        a("v_mov_b32 v15, v13")
        for i in range(n):
            t, ks = i // 8, i % 8
            acc = ACC[t % 2]
            if i > 0 or True: a(f"s_waitcnt lgkmcnt({min(6, n-1-i)})")
            a(f"v_mfma_f32_32x32x16_bf16 v[{acc}:{acc+15}], a[{4*(i%8)}:{4*(i%8)+3}], {v4(OB+4*ks)}, " + ("0" if ks == 0 else f"v[{acc}:{acc+15}]"))
            j = i + 7
            if j < n:
                o = off(j) - base
                if o > 65535 - 1024:
                    a("v_add_u32 v15, 65536, v15"); base += 65536; o = off(j) - base
                a(f"ds_read_b128 a[{4*(j%8)}:{4*(j%8)+3}], v15 offset:{o}")
            if (ks == 3 and t >= 1) or i == n-1:
                c2 = t-1 if i != n-1 else t
                if i == n-1: a("s_nop 7\ns_nop 3")
                ac = ACC[c2 % 2]
                for u in range(2):
                    for k in range(4):
                        a(f"v_cvt_pk_bf16_f32 v{ST+4*u+k}, v{ac+8*u+2*k}, v{ac+8*u+2*k+1}")
                for u in range(2):
                    a(f"buffer_store_dwordx4 {v4(ST+4*u)}, v7, {WSR}, s{S_B+13} offen offset:{u*128} sc1")
                a(f"s_add_u32 s{S_B+13}, s{S_B+13}, 1024")
                a("s_nop 1")
    g4 = a.label("Lal"); ge = a.label("Lal")
    a(f"s_cmp_lt_u32 s{S_W}, 2\ns_cbranch_scc0 {g4}")
    gemm(5)
    a(f"s_branch {ge}\n{g4}:")
    gemm(4)
    a(f"{ge}:\ns_waitcnt vmcnt(0)\ns_barrier")
    sk = a.label("Lal")
    a(f"s_cmp_lg_u32 s{S_W}, 0\ns_cbranch_scc1 {sk}")
    flag_addr(a, S_B+6, FG_PA, S_SEG, 128, h, 4)
    signal(a, S_B+6, stage=4)
    a(f"{sk}:")
    if not one_seg_sgpr:
        a(f"""s_add_u32 s{S_SEG}, s{S_SEG}, 1
        s_cmp_lt_u32 s{S_SEG}, 64
        s_cbranch_scc1 {lp}""")
    a("s_waitcnt vmcnt(0)")
```

```python
import sys
from asmlib import *
from layout import *
import roles as R
import importlib
args = dict(x.split("=") for x in sys.argv[2:])
T = importlib.import_module(args.get("mod","team12"))
KN = args.get("kn", "sequential_preLN__memory_aug_recurrent_mem_tr__dense_activation_relu__prompt_kernel")
enable = set(args.get("roles","team,t1,alpha,ffn,b0,gamma,ln").split(","))
report = int(args.get("report","0"))
R.REPORT[0] = bool(report)
if 'sleep' in args: R.SLEEP[0] = int(args['sleep'])
R.NT['t1'] = args.get('t1nt','nt').replace('-','')
hdr = open("sequential_preLN__memory_aug_recurrent_mem_tr__dense_activation_relu__prompt.s.ref").read().split("\n")
a = Asm()
for l in hdr:
    if l.startswith("; @launch"): a.raw("; @launch grid=(256,1,1) block=(256,1,1) lds=163840")
    elif l.startswith(";"): a.raw(l)
    else: break
a.raw('.amdgcn_target "amdgcn-amd-amdhsa--gfx950"')
a.raw(".text")
a.raw(kernel_header(KN))
S_WS, S_DBG, S_W = 8, 16, 20
S_ROLE = 4
a(f"""
s_cmp_ge_u32 s2, 256
s_cbranch_scc1 L_end
s_load_dwordx2 s[4:5], s[0:1], {KA_DBG}
s_load_dwordx2 s[6:7], s[0:1], {KA_WS}
s_getreg_b32 s3, hwreg(HW_REG_XCC_ID)
s_and_b32 s3, s3, 7
v_lshrrev_b32 v1, 6, v0
s_waitcnt lgkmcnt(0)
s_mov_b32 s{S_WS}, s6
s_mov_b32 s{S_WS+1}, s7
s_mov_b32 s{S_WS+2}, {WS_SIZE}
s_mov_b32 s{S_WS+3}, 0x20000
s_mov_b32 s{S_DBG}, s4
s_mov_b32 s{S_DBG+1}, s5
s_mov_b32 s{S_DBG+2}, 256
s_mov_b32 s{S_DBG+3}, 0x20000
v_readfirstlane_b32 s{S_W}, v1
s_mov_b32 s23, 0
s_cmp_lg_u32 s{S_W}, 0
s_cbranch_scc1 L_norank
s_lshl_b32 s24, s3, 2
v_mov_b32 v3, s24
v_mov_b32 v4, 1
s_mov_b64 exec, 1
buffer_atomic_add v4, v3, s[{S_DBG}:{S_DBG+3}], 0 offen sc0 sc1
s_waitcnt vmcnt(0)
v_readfirstlane_b32 s25, v4
s_mov_b32 s26, 0                     ; role: team
s_cmp_eq_u32 s3, 0
s_cselect_b32 s27, 1, 0
s_cmp_lt_u32 s25, {args.get("teamcap","32")}
s_cselect_b32 s27, s27, 0            ; 1 = native team member
s_cmp_eq_u32 s27, 1
s_cbranch_scc1 L_have
v_mov_b32 v3, {DB_WORKER*4}
v_mov_b32 v4, 1
buffer_atomic_add v4, v3, s[{S_DBG}:{S_DBG+3}], 0 offen sc0 sc1
s_waitcnt vmcnt(0)
v_readfirstlane_b32 s25, v4
s_mov_b32 s26, 1
s_cmp_lt_u32 s25, 224
s_cbranch_scc1 L_have
; drafted into the team (fewer than 32 workgroups on XCC 0): head = 31 - (wi-224), mark impure
s_sub_u32 s25, 255, s25
s_mov_b32 s26, 0
v_mov_b32 v3, {DB_IMPURE*4}
v_mov_b32 v4, 1
buffer_atomic_add v4, v3, s[{S_DBG}:{S_DBG+3}], 0 offen sc1
s_waitcnt vmcnt(0)
L_have:
s_mov_b64 exec, -1
s_lshl_b32 s26, s26, 16
s_or_b32 s25, s25, s26
v_mov_b32 v5, s25
v_mov_b32 v6, 0
ds_write_b32 v6, v5
s_waitcnt lgkmcnt(0)
L_norank:
s_barrier
v_mov_b32 v6, 0
ds_read_b32 v5, v6
s_waitcnt lgkmcnt(0)
v_readfirstlane_b32 s25, v5
s_barrier
s_and_b32 s21, s25, 0xffff
s_lshr_b32 s26, s25, 16
;;REPSTART
s_cmp_eq_u32 s26, 0
s_cbranch_scc1 L_team
""")
a(f"""
s_cmp_lg_u32 s21, 0
s_cbranch_scc1 L_noinit
v_and_b32 v1, 63, v0
v_lshlrev_b32 v1, 4, v1
v_mov_b32 v4, 0
v_mov_b32 v5, 0
v_mov_b32 v6, 0
v_mov_b32 v7, 0
s_mul_i32 s24, s{S_W}, {FLAGS_BYTES//4}
s_add_u32 s24, s24, {WS_FLAGS}
""")
for i in range(FLAGS_BYTES//4096):
    a(f"buffer_store_dwordx4 v[4:7], v1, s[{S_WS}:{S_WS+3}], s24 offen sc1")
    a("s_add_u32 s24, s24, 1024")
a(f"""s_waitcnt vmcnt(0)
s_barrier
s_cmp_lg_u32 s{S_W}, 0
s_cbranch_scc1 L_noinit
s_mov_b64 exec, 1
v_mov_b32 v3, {DB_INIT*4}
v_mov_b32 v4, 1
buffer_atomic_add v4, v3, s[{S_DBG}:{S_DBG+3}], 0 offen sc1
s_mov_b64 exec, -1
L_noinit:
s_cmp_lt_u32 s21, 96
s_cbranch_scc1 L_t1
s_cmp_lt_u32 s21, 128
s_cbranch_scc1 L_alpha
s_cmp_lt_u32 s21, 164
s_cbranch_scc1 L_ffn
s_mov_b32 s58, s21
s_sub_u32 s21, s21, 164
""")
if "ln" in enable:
    R.wait_init(a, "L_wfail")
    R.role_ln(a, "L_wfail", 0, 60)
a("""s_mov_b32 s21, s58
s_cmp_lt_u32 s21, 196
s_cbranch_scc1 L_b0
s_cmp_lt_u32 s21, 220
s_cbranch_scc1 L_gamma
s_sub_u32 s21, s21, 188
s_branch L_spare
""")
def far(label_from, fn, name):
    a(f"{label_from}:")
    if name in enable: fn()
    a("s_branch L_end")
NTAIL = int(args.get("ntail","2"))
S0 = int(args.get("s0","32"))
R.NA1[0] = 64 - NTAIL
def t1_then_alpha():
    a("s_mov_b32 s59, s21")
    R.role_t1(a, "L_wfail")
    if NTAIL:
        a(f"""s_lshr_b32 s63, s59, 5
        s_and_b32 s21, s59, 31
        s_cmp_ge_u32 s63, {NTAIL}
        s_cbranch_scc1 {"L_ffn2" if S0 < 64 else "L_end"}
        s_add_u32 s63, s63, {64-NTAIL}
        s_and_b32 s21, s59, 31
        s_barrier""")
        R.role_alpha2(a, "L_wfail", one_seg_sgpr=63)
far("L_t1", t1_then_alpha, "t1")
def late(n):
    for _ in range(n): a("s_sleep 127")
DL = int(args.get("late","0"))
PF = int(args.get("pf","1"))
def prefetch(first, nwg):
    if not PF: return
    nw = nwg*4
    order = [(KA_WQ, 576*8192), (KA_WK, 576*8192), (KA_WV, 576*8192), (KA_WO, 4096*1152)]
    a(f"""s_sub_u32 s24, s21, {first}
    s_lshl_b32 s24, s24, 2
    s_add_u32 s24, s24, s{S_W}
    v_and_b32 v1, 63, v0
    v_lshlrev_b32 v1, 4, v1""")
    for ka, nb in order:
        lp = a.label("Lpf"); dn = a.label("Lpf")
        a(f"""s_load_dwordx2 s[26:27], s[0:1], {ka}
        s_waitcnt lgkmcnt(0)
        s_mov_b32 s12, s26
        s_mov_b32 s13, s27
        s_mov_b32 s14, {nb}
        s_mov_b32 s15, 0x20000
        s_lshl_b32 s28, s24, 10
        {lp}:
        s_cmp_ge_u32 s28, {nb}
        s_cbranch_scc1 {dn}
        buffer_load_dwordx4 v[4:7], v1, s[12:15], s28 offen
        s_add_u32 s28, s28, {nw*1024}
        s_waitcnt vmcnt(24)
        s_branch {lp}
        {dn}:""")
    a("s_waitcnt vmcnt(0)")
far("L_alpha", lambda: (prefetch(96, 68), late(DL), a("s_sub_u32 s21, s21, 96"), R.role_alpha(a, "L_wfail")), "alpha")
far("L_ffn", lambda: (prefetch(96, 68), late(DL), a("s_sub_u32 s21, s21, 128"), R.role_ffn(a, "L_wfail", first=0, s0=S0)), "ffn")
if S0 < 64:
    a("L_ffn2:")
    a("s_barrier")
    R.role_ffn(a, "L_wfail", first=S0+1, s0=S0)
    a("s_branch L_end")
far("L_b0", lambda: (a("s_sub_u32 s21, s21, 164"), R.role_reduce(a, "L_wfail", False, npar=4)), "b0")
far("L_gamma", lambda: (a("s_sub_u32 s21, s21, 196"), R.role_reduce(a, "L_wfail", True, npar=3)), "gamma")
a("L_wfail:\ns_branch L_end")
a("L_spare:\ns_branch " + ("L_ffn2" if S0 < 64 else "L_end"))
a("L_team:")
if "team" in enable:
    g = {k: v for k, v in vars(T).items() if k.startswith(("S_", "V_"))}
    S_T0 = T.S_T0
    a(f"""
    s_and_b32 s{S_T0}, s{T.S_W}, 1
    s_lshl_b32 s{S_T0}, s{S_T0}, 5
    s_add_u32 s{T.S_CT}, s{T.S_H}, s{S_T0}
    s_cmp_lt_u32 s{T.S_CT}, 36
    s_cselect_b32 s{S_T0+1}, 1, 0
    s_cmp_lt_u32 s{T.S_W}, 2
    s_cselect_b32 s{T.S_ISRED}, s{S_T0+1}, 0
    s_cselect_b32 s{T.S_ISRST}, 0, s{S_T0+1}
    s_min_u32 s{T.S_CT}, s{T.S_CT}, 35
    s_lshr_b32 s{S_T0}, s{T.S_CT}, 2
    s_and_b32 s{S_T0+1}, s{S_T0}, 1
    s_cmp_eq_u32 s{S_T0+1}, 0
    s_cselect_b32 s{T.S_EARLY}, 1, 0
    s_cmp_eq_u32 s{S_T0}, 8
    s_cselect_b32 s{T.S_EARLY}, {0 if args.get('mod','team12') in ('team9',) else 1}, s{T.S_EARLY}
    """)
    t = T.Team(a, stamps=int(args.get('stamps','0')), sel=tuple(int(x) for x in args.get('sel','0,1,2,3,4,5,6,7').split(',')), nsteps=64, d1=int(args.get('d1','800')), d2=int(args.get('d2','0')), d3=int(args.get('d3','320')), flags=True, spin_cap=3000000, opts=('rep' if report else '')+args.get('topts',''))
    def rep_team(k):
        a(f"""s_memrealtime s[100:101]
        s_waitcnt lgkmcnt(0)
        s_mov_b32 s{S_T0+2}, {WS_REP + 0x8000 + k*64}
        s_mov_b64 exec, 1
        v_mov_b32 v20, s100
        buffer_atomic_umax v20, off, {W}, s{S_T0+2} sc1
        s_mov_b64 exec, -1
        s_waitcnt vmcnt(0)""")
    W = f"s[{S_WS}:{S_WS+3}]"
    def arrive():
        sk = a.label("Lar")
        a(f"""s_barrier
        s_cmp_lg_u32 s{T.S_W}, 0
        s_cbranch_scc1 {sk}
        s_mov_b64 exec, 1
        v_mov_b32 v28, {DB_TEAMBAR*4}
        v_mov_b32 v29, 1
        buffer_atomic_add v29, v28, s[{S_DBG}:{S_DBG+3}], 0 offen sc1
        s_waitcnt vmcnt(0)
        s_mov_b64 exec, -1
        {sk}:""")
    if report: rep_team(0)
    t.consts()
    if report: rep_team(4)
    t.load_weights(stampf=(lambda i: rep_team(4+i)) if report else None, mid=lambda: (t.init_mailboxes('sc1'), arrive()))
    a("s_waitcnt vmcnt(0) lgkmcnt(0)")
    if report: rep_team(2)
    DBG = f"s[{S_DBG}:{S_DBG+3}]"
    lp = a.label("Lsc"); ok = a.label("Lsc")
    a(f"""s_mov_b32 s{T.S_SPIN}, 0
    s_lshl_b32 s{S_T0+1}, s{T.S_H}, 4
    s_add_u32 s{S_T0+1}, s{S_T0+1}, {FG_QKV}
    v_lshrrev_b32 v21, 2, v{T.V_L16}             ; lane*4
    {lp}:
    s_mov_b64 exec, 0xffff
    buffer_load_dword v20, v21, {DBG}, 0 offen sc1
    s_mov_b64 exec, 6
    buffer_load_dword v22, v21, {W}, s{S_T0+1} offen sc1
    buffer_load_dword v23, v21, {W}, s{S_T0+1} offen offset:512 sc1
    s_waitcnt vmcnt(0)
    v_readlane_b32 s{S_T0+2}, v20, {DB_TEAMBAR}
    v_readlane_b32 s{S_T0+3}, v20, {DB_INIT}
    v_readlane_b32 s{S_T0+4}, v20, {DB_IMPURE}
    v_min_u32 v22, v22, v23
    v_cmp_eq_u32 vcc, 0, v22
    s_mov_b64 exec, -1
    s_cmp_lt_u32 s{S_T0+2}, 32
    s_cbranch_scc1 {lp}r
    s_cmp_eq_u32 s{S_T0+3}, 0
    s_cbranch_scc1 {lp}r
    s_cbranch_vccz {ok}
    {lp}r:
    s_add_u32 s{T.S_SPIN}, s{T.S_SPIN}, 1
    s_cmp_gt_u32 s{T.S_SPIN}, {args.get("cap","3000000")}
    s_cbranch_scc1 L_tfail
    s_branch {lp}
    {ok}:
    """)
    wl = a.label("Lwm")
    a(f"s_cmp_lg_u32 s{T.S_W}, 3\ns_cbranch_scc1 {wl}")
    for base in (WS_KF, WS_VF):
        a(f"s_lshl_b32 s{S_T0+1}, s{T.S_H}, 13\ns_add_u32 s{S_T0+1}, s{S_T0+1}, {base}")
        a(f"buffer_load_dword v24, v{T.V_WARM}, {W}, s{S_T0+1} offen sc1")
    a(f"{wl}:")
    a(f"s_barrier\ns_cmp_lg_u32 s{S_T0+4}, 0\ns_cbranch_scc1 L_slowteam")
    if report: rep_team(1)
    t.main_loop("L_tfail", "L_tdone", sc="", tag="f")
    a("L_slowteam:")
    t2 = T.Team(a, stamps=False, nsteps=64, d1=1600, d2=600, d3=320, flags=True, spin_cap=3000000)
    t2.main_loop("L_tfail", "L_tdone", sc="sc1", tag="s")
    a("L_tdone:")
    if report: rep_team(3)
    a(f"""
    s_waitcnt vmcnt(0)
    ;;REPEND
    s_barrier
    s_cmp_lg_u32 s{T.S_W}, 3
    s_cbranch_scc1 L_tfail
    s_lshl_b32 s{S_T0}, s{T.S_H}, 4
    s_add_u32 s{S_T0}, s{S_T0}, {FG_M + 62*512}
    s_mov_b64 exec, 1
    v_mov_b32 v20, 1
    buffer_store_dword v20, off, {W}, s{S_T0} sc1
    s_add_u32 s{S_T0}, s{S_T0}, 512
    buffer_store_dword v20, off, {W}, s{S_T0} sc1
    s_mov_b64 exec, -1
    L_tfail:
    """)
    if int(args.get('stamps','0')):
        a(f"""s_lshl_b32 s{S_T0}, s{T.S_H}, 2
        s_add_u32 s{S_T0}, s{S_T0}, s{T.S_W}
        s_lshl_b32 s{S_T0}, s{S_T0}, 6
        s_add_u32 s{S_T0}, s{S_T0}, {WS_REP + 0x9000}
        v_mov_b32 v3, 0
        s_mov_b64 exec, 1""")
        for q in range(3):
            for i in range(4): a(f"v_mov_b32 v{8+i}, s{min(84+q*4+i,93)}")
            if q == 2: a(f"v_mov_b32 v11, s{T.S_SPIN}")
            a(f"buffer_store_dwordx4 v[8:11], v3, {W}, s{S_T0} offen offset:{q*16}")
            a("s_nop 1")
        a("s_mov_b64 exec, -1")
a("""
L_end:
s_waitcnt vmcnt(0)
s_endpgm
""")
a.raw(kernel_desc(KN))
open(sys.argv[1],"w").write(a.text())
```

```python
import sys
from asmlib import *
from layout import *
import roles as R
import importlib
args = dict(x.split("=") for x in sys.argv[2:])
T = importlib.import_module(args.get("mod","team12"))
KN = args.get("kn", "sequential_preLN__memory_aug_recurrent_mem_tr__dense_activation_relu__prompt_kernel")
enable = set(args.get("roles","team,t1,alpha,ffn,b0,gamma,ln").split(","))
report = int(args.get("report","0"))
R.REPORT[0] = bool(report)
if 'sleep' in args: R.SLEEP[0] = int(args['sleep'])
R.NT['t1'] = args.get('t1nt','nt').replace('-','')
hdr = open("sequential_preLN__memory_aug_recurrent_mem_tr__dense_activation_relu__prompt.s.ref").read().split("\n")
a = Asm()
for l in hdr:
    if l.startswith("; @launch"): a.raw("; @launch grid=(256,1,1) block=(256,1,1) lds=163840")
    elif l.startswith(";"): a.raw(l)
    else: break
a.raw('.amdgcn_target "amdgcn-amd-amdhsa--gfx950"')
a.raw(".text")
a.raw(kernel_header(KN))
S_WS, S_DBG, S_W = 8, 16, 20
S_ROLE = 4
a(f"""
s_cmp_ge_u32 s2, 256
s_cbranch_scc1 L_end
s_load_dwordx2 s[4:5], s[0:1], {KA_DBG}
s_load_dwordx2 s[6:7], s[0:1], {KA_WS}
s_getreg_b32 s3, hwreg(HW_REG_XCC_ID)
s_and_b32 s3, s3, 7
v_lshrrev_b32 v1, 6, v0
s_waitcnt lgkmcnt(0)
s_mov_b32 s{S_WS}, s6
s_mov_b32 s{S_WS+1}, s7
s_mov_b32 s{S_WS+2}, {WS_SIZE}
s_mov_b32 s{S_WS+3}, 0x20000
s_mov_b32 s{S_DBG}, s4
s_mov_b32 s{S_DBG+1}, s5
s_mov_b32 s{S_DBG+2}, 256
s_mov_b32 s{S_DBG+3}, 0x20000
v_readfirstlane_b32 s{S_W}, v1
s_mov_b32 s23, 0
s_cmp_lg_u32 s{S_W}, 0
s_cbranch_scc1 L_norank
s_lshl_b32 s24, s3, 2
v_mov_b32 v3, s24
v_mov_b32 v4, 1
s_mov_b64 exec, 1
buffer_atomic_add v4, v3, s[{S_DBG}:{S_DBG+3}], 0 offen sc0 sc1
s_waitcnt vmcnt(0)
v_readfirstlane_b32 s25, v4
s_mov_b32 s26, 0                     ; role: team
s_cmp_eq_u32 s3, 0
s_cselect_b32 s27, 1, 0
s_cmp_lt_u32 s25, {args.get("teamcap","32")}
s_cselect_b32 s27, s27, 0            ; 1 = native team member
s_cmp_eq_u32 s27, 1
s_cbranch_scc1 L_have
v_mov_b32 v3, {DB_WORKER*4}
v_mov_b32 v4, 1
buffer_atomic_add v4, v3, s[{S_DBG}:{S_DBG+3}], 0 offen sc0 sc1
s_waitcnt vmcnt(0)
v_readfirstlane_b32 s25, v4
s_mov_b32 s26, 1
s_cmp_lt_u32 s25, 224
s_cbranch_scc1 L_have
; drafted into the team (fewer than 32 workgroups on XCC 0): head = 31 - (wi-224), mark impure
s_mov_b32 s26, 2
s_cmp_gt_u32 s25, 255
s_cbranch_scc1 L_have
s_sub_u32 s25, 255, s25
s_mov_b32 s26, 0
v_mov_b32 v3, {DB_IMPURE*4}
v_mov_b32 v4, 1
buffer_atomic_add v4, v3, s[{S_DBG}:{S_DBG+3}], 0 offen sc1
s_waitcnt vmcnt(0)
L_have:
s_mov_b64 exec, -1
s_lshl_b32 s26, s26, 16
s_or_b32 s25, s25, s26
v_mov_b32 v5, s25
v_mov_b32 v6, 0
ds_write_b32 v6, v5
s_waitcnt lgkmcnt(0)
L_norank:
s_barrier
v_mov_b32 v6, 0
ds_read_b32 v5, v6
s_waitcnt lgkmcnt(0)
v_readfirstlane_b32 s25, v5
s_barrier
s_and_b32 s21, s25, 0xffff
s_lshr_b32 s26, s25, 16
;;REPSTART
s_cmp_eq_u32 s26, 0
s_cbranch_scc1 L_team
s_cmp_eq_u32 s26, 2
s_cbranch_scc1 L_end
""")
a(f"""
s_cmp_lg_u32 s21, 0
s_cbranch_scc1 L_noinit
v_and_b32 v1, 63, v0
v_lshlrev_b32 v1, 4, v1
v_mov_b32 v4, 0
v_mov_b32 v5, 0
v_mov_b32 v6, 0
v_mov_b32 v7, 0
s_mul_i32 s24, s{S_W}, {FLAGS_BYTES//4}
s_add_u32 s24, s24, {WS_FLAGS}
""")
for i in range(FLAGS_BYTES//4096):
    a(f"buffer_store_dwordx4 v[4:7], v1, s[{S_WS}:{S_WS+3}], s24 offen sc1")
    a("s_add_u32 s24, s24, 1024")
a(f"""s_waitcnt vmcnt(0)
s_barrier
s_cmp_lg_u32 s{S_W}, 0
s_cbranch_scc1 L_noinit
s_mov_b64 exec, 1
v_mov_b32 v3, {DB_INIT*4}
v_mov_b32 v4, 1
buffer_atomic_add v4, v3, s[{S_DBG}:{S_DBG+3}], 0 offen sc1
s_mov_b64 exec, -1
L_noinit:
s_cmp_lt_u32 s21, 96
s_cbranch_scc1 L_t1
s_cmp_lt_u32 s21, 128
s_cbranch_scc1 L_alpha
s_cmp_lt_u32 s21, 164
s_cbranch_scc1 L_ffn
s_mov_b32 s58, s21
s_sub_u32 s21, s21, 164
""")
if "ln" in enable:
    R.wait_init(a, "L_wfail")
    R.role_ln(a, "L_wfail", 0, 60)
a("""s_mov_b32 s21, s58
s_cmp_lt_u32 s21, 196
s_cbranch_scc1 L_b0
s_cmp_lt_u32 s21, 220
s_cbranch_scc1 L_gamma
s_sub_u32 s21, s21, 188
s_branch L_spare
""")
def far(label_from, fn, name):
    a(f"{label_from}:")
    if name in enable: fn()
    a("s_branch L_end")
NTAIL = int(args.get("ntail","2"))
S0 = int(args.get("s0","32"))
R.NA1[0] = 64 - NTAIL
def t1_then_alpha():
    a("s_mov_b32 s59, s21")
    R.role_t1(a, "L_wfail")
    if NTAIL:
        a(f"""s_lshr_b32 s63, s59, 5
        s_and_b32 s21, s59, 31
        s_cmp_ge_u32 s63, {NTAIL}
        s_cbranch_scc1 {"L_ffn2" if S0 < 64 else "L_end"}
        s_add_u32 s63, s63, {64-NTAIL}
        s_and_b32 s21, s59, 31
        s_barrier""")
        R.role_alpha2(a, "L_wfail", one_seg_sgpr=63)
far("L_t1", t1_then_alpha, "t1")
def late(n):
    for _ in range(n): a("s_sleep 127")
DL = int(args.get("late","0"))
PF = int(args.get("pf","1"))
def prefetch(first, nwg):
    if not PF: return
    nw = nwg*4
    order = [(KA_WQ, 576*8192), (KA_WK, 576*8192), (KA_WV, 576*8192), (KA_WO, 4096*1152)]
    a(f"""s_sub_u32 s24, s21, {first}
    s_lshl_b32 s24, s24, 2
    s_add_u32 s24, s24, s{S_W}
    v_and_b32 v1, 63, v0
    v_lshlrev_b32 v1, 4, v1""")
    for ka, nb in order:
        lp = a.label("Lpf"); dn = a.label("Lpf")
        a(f"""s_load_dwordx2 s[26:27], s[0:1], {ka}
        s_waitcnt lgkmcnt(0)
        s_mov_b32 s12, s26
        s_mov_b32 s13, s27
        s_mov_b32 s14, {nb}
        s_mov_b32 s15, 0x20000
        s_lshl_b32 s28, s24, 10
        {lp}:
        s_cmp_ge_u32 s28, {nb}
        s_cbranch_scc1 {dn}
        buffer_load_dwordx4 v[4:7], v1, s[12:15], s28 offen
        s_add_u32 s28, s28, {nw*1024}
        s_waitcnt vmcnt(24)
        s_branch {lp}
        {dn}:""")
    a("s_waitcnt vmcnt(0)")
far("L_alpha", lambda: (prefetch(96, 68), late(DL), a("s_sub_u32 s21, s21, 96"), R.role_alpha(a, "L_wfail")), "alpha")
far("L_ffn", lambda: (prefetch(96, 68), late(DL), a("s_sub_u32 s21, s21, 128"), R.role_ffn(a, "L_wfail", first=0, s0=S0)), "ffn")
if S0 < 64:
    a("L_ffn2:")
    a("s_barrier")
    R.role_ffn(a, "L_wfail", first=S0+1, s0=S0)
    a("s_branch L_end")
far("L_b0", lambda: (a("s_sub_u32 s21, s21, 164"), R.role_reduce(a, "L_wfail", False, npar=4)), "b0")
far("L_gamma", lambda: (a("s_sub_u32 s21, s21, 196"), R.role_reduce(a, "L_wfail", True, npar=3)), "gamma")
a("L_wfail:\ns_branch L_end")
a("L_spare:\ns_branch " + ("L_ffn2" if S0 < 64 else "L_end"))
a("L_team:")
if "team" in enable:
    g = {k: v for k, v in vars(T).items() if k.startswith(("S_", "V_"))}
    S_T0 = T.S_T0
    a(f"""
    s_and_b32 s{S_T0}, s{T.S_W}, 1
    s_lshl_b32 s{S_T0}, s{S_T0}, 5
    s_add_u32 s{T.S_CT}, s{T.S_H}, s{S_T0}
    s_cmp_lt_u32 s{T.S_CT}, 36
    s_cselect_b32 s{S_T0+1}, 1, 0
    s_cmp_lt_u32 s{T.S_W}, 2
    s_cselect_b32 s{T.S_ISRED}, s{S_T0+1}, 0
    s_cselect_b32 s{T.S_ISRST}, 0, s{S_T0+1}
    s_min_u32 s{T.S_CT}, s{T.S_CT}, 35
    s_lshr_b32 s{S_T0}, s{T.S_CT}, 2
    s_and_b32 s{S_T0+1}, s{S_T0}, 1
    s_cmp_eq_u32 s{S_T0+1}, 0
    s_cselect_b32 s{T.S_EARLY}, 1, 0
    s_cmp_eq_u32 s{S_T0}, 8
    s_cselect_b32 s{T.S_EARLY}, {0 if args.get('mod','team12') in ('team9',) else 1}, s{T.S_EARLY}
    """)
    t = T.Team(a, stamps=int(args.get('stamps','0')), sel=tuple(int(x) for x in args.get('sel','0,1,2,3,4,5,6,7').split(',')), nsteps=64, d1=int(args.get('d1','800')), d2=int(args.get('d2','0')), d3=int(args.get('d3','320')), flags=True, spin_cap=3000000, opts=('rep' if report else '')+args.get('topts',''))
    def rep_team(k):
        a(f"""s_memrealtime s[100:101]
        s_waitcnt lgkmcnt(0)
        s_mov_b32 s{S_T0+2}, {WS_REP + 0x8000 + k*64}
        s_mov_b64 exec, 1
        v_mov_b32 v20, s100
        buffer_atomic_umax v20, off, {W}, s{S_T0+2} sc1
        s_mov_b64 exec, -1
        s_waitcnt vmcnt(0)""")
    W = f"s[{S_WS}:{S_WS+3}]"
    def arrive():
        sk = a.label("Lar")
        a(f"""s_barrier
        s_cmp_lg_u32 s{T.S_W}, 0
        s_cbranch_scc1 {sk}
        s_mov_b64 exec, 1
        v_mov_b32 v28, {DB_TEAMBAR*4}
        v_mov_b32 v29, 1
        buffer_atomic_add v29, v28, s[{S_DBG}:{S_DBG+3}], 0 offen sc1
        s_waitcnt vmcnt(0)
        s_mov_b64 exec, -1
        {sk}:""")
    if report: rep_team(0)
    t.consts()
    if report: rep_team(4)
    t.load_weights(stampf=(lambda i: rep_team(4+i)) if report else None, mid=lambda: (t.init_mailboxes('sc1'), arrive()))
    a("s_waitcnt vmcnt(0) lgkmcnt(0)")
    if report: rep_team(2)
    DBG = f"s[{S_DBG}:{S_DBG+3}]"
    lp = a.label("Lsc"); ok = a.label("Lsc")
    a(f"""s_mov_b32 s{T.S_SPIN}, 0
    s_lshl_b32 s{S_T0+1}, s{T.S_H}, 4
    s_add_u32 s{S_T0+1}, s{S_T0+1}, {FG_QKV}
    v_lshrrev_b32 v21, 2, v{T.V_L16}             ; lane*4
    {lp}:
    s_mov_b64 exec, 0xffff
    buffer_load_dword v20, v21, {DBG}, 0 offen sc1
    s_mov_b64 exec, 6
    buffer_load_dword v22, v21, {W}, s{S_T0+1} offen sc1
    buffer_load_dword v23, v21, {W}, s{S_T0+1} offen offset:512 sc1
    s_waitcnt vmcnt(0)
    v_readlane_b32 s{S_T0+2}, v20, {DB_TEAMBAR}
    v_readlane_b32 s{S_T0+3}, v20, {DB_INIT}
    v_readlane_b32 s{S_T0+4}, v20, {DB_IMPURE}
    v_min_u32 v22, v22, v23
    v_cmp_eq_u32 vcc, 0, v22
    s_mov_b64 exec, -1
    s_cmp_lt_u32 s{S_T0+2}, 32
    s_cbranch_scc1 {lp}r
    s_cmp_eq_u32 s{S_T0+3}, 0
    s_cbranch_scc1 {lp}r
    s_cbranch_vccz {ok}
    {lp}r:
    s_add_u32 s{T.S_SPIN}, s{T.S_SPIN}, 1
    s_cmp_gt_u32 s{T.S_SPIN}, {args.get("cap","3000000")}
    s_cbranch_scc1 L_tfail
    s_branch {lp}
    {ok}:
    """)
    wl = a.label("Lwm")
    a(f"s_cmp_lg_u32 s{T.S_W}, 3\ns_cbranch_scc1 {wl}")
    for base in (WS_KF, WS_VF):
        a(f"s_lshl_b32 s{S_T0+1}, s{T.S_H}, 13\ns_add_u32 s{S_T0+1}, s{S_T0+1}, {base}")
        a(f"buffer_load_dword v24, v{T.V_WARM}, {W}, s{S_T0+1} offen sc1")
    a(f"{wl}:")
    a(f"s_barrier\ns_cmp_lg_u32 s{S_T0+4}, 0\ns_cbranch_scc1 L_slowteam")
    if report: rep_team(1)
    t.main_loop("L_tfail", "L_tdone", sc="", tag="f")
    a("L_slowteam:")
    t2 = T.Team(a, stamps=False, nsteps=64, d1=1600, d2=600, d3=320, flags=True, spin_cap=3000000)
    t2.main_loop("L_tfail", "L_tdone", sc="sc1", tag="s")
    a("L_tdone:")
    if report: rep_team(3)
    a(f"""
    s_waitcnt vmcnt(0)
    ;;REPEND
    s_barrier
    s_cmp_lg_u32 s{T.S_W}, 3
    s_cbranch_scc1 L_tfail
    s_lshl_b32 s{S_T0}, s{T.S_H}, 4
    s_add_u32 s{S_T0}, s{S_T0}, {FG_M + 62*512}
    s_mov_b64 exec, 1
    v_mov_b32 v20, 1
    buffer_store_dword v20, off, {W}, s{S_T0} sc1
    s_add_u32 s{S_T0}, s{S_T0}, 512
    buffer_store_dword v20, off, {W}, s{S_T0} sc1
    s_mov_b64 exec, -1
    L_tfail:
    """)
    if int(args.get('stamps','0')):
        a(f"""s_lshl_b32 s{S_T0}, s{T.S_H}, 2
        s_add_u32 s{S_T0}, s{S_T0}, s{T.S_W}
        s_lshl_b32 s{S_T0}, s{S_T0}, 6
        s_add_u32 s{S_T0}, s{S_T0}, {WS_REP + 0x9000}
        v_mov_b32 v3, 0
        s_mov_b64 exec, 1""")
        for q in range(3):
            for i in range(4): a(f"v_mov_b32 v{8+i}, s{min(84+q*4+i,93)}")
            if q == 2: a(f"v_mov_b32 v11, s{T.S_SPIN}")
            a(f"buffer_store_dwordx4 v[8:11], v3, {W}, s{S_T0} offen offset:{q*16}")
            a("s_nop 1")
        a("s_mov_b64 exec, -1")
a("""
L_end:
s_waitcnt vmcnt(0)
s_endpgm
""")
a.raw(kernel_desc(KN))
open(sys.argv[1],"w").write(a.text())
```

```python
import sys
from asmlib import *
from layout import *
import roles as R
import importlib
args = dict(x.split("=") for x in sys.argv[2:])
T = importlib.import_module(args.get("mod","team12"))
KN = args.get("kn", "sequential_preLN__memory_aug_recurrent_mem_tr__dense_activation_relu__prompt_kernel")
enable = set(args.get("roles","team,t1,alpha,ffn,b0,gamma,ln").split(","))
report = int(args.get("report","0"))
R.REPORT[0] = bool(report)
if 'sleep' in args: R.SLEEP[0] = int(args['sleep'])
R.NT['t1'] = args.get('t1nt','nt').replace('-','')
hdr = open("sequential_preLN__memory_aug_recurrent_mem_tr__dense_activation_relu__prompt.s.ref").read().split("\n")
a = Asm()
for l in hdr:
    if l.startswith("; @launch"): a.raw("; @launch grid=(256,1,1) block=(256,1,1) lds=163840")
    elif l.startswith(";"): a.raw(l)
    else: break
a.raw('.amdgcn_target "amdgcn-amd-amdhsa--gfx950"')
a.raw(".text")
a.raw(kernel_header(KN))
S_WS, S_DBG, S_W = 8, 16, 20
S_ROLE = 4
a(f"""
s_cmp_ge_u32 s2, 256
s_cbranch_scc1 L_end
s_load_dwordx2 s[4:5], s[0:1], {KA_DBG}
s_load_dwordx2 s[6:7], s[0:1], {KA_WS}
s_getreg_b32 s3, hwreg(HW_REG_XCC_ID)
s_and_b32 s3, s3, 7
v_lshrrev_b32 v1, 6, v0
s_waitcnt lgkmcnt(0)
s_mov_b32 s{S_WS}, s6
s_mov_b32 s{S_WS+1}, s7
s_mov_b32 s{S_WS+2}, {WS_SIZE}
s_mov_b32 s{S_WS+3}, 0x20000
s_mov_b32 s{S_DBG}, s4
s_mov_b32 s{S_DBG+1}, s5
s_mov_b32 s{S_DBG+2}, 256
s_mov_b32 s{S_DBG+3}, 0x20000
v_readfirstlane_b32 s{S_W}, v1
s_mov_b32 s23, 0
s_cmp_lg_u32 s{S_W}, 0
s_cbranch_scc1 L_norank
s_lshl_b32 s24, s3, 2
v_mov_b32 v3, s24
v_mov_b32 v4, 1
s_mov_b64 exec, 1
buffer_atomic_add v4, v3, s[{S_DBG}:{S_DBG+3}], 0 offen sc0 sc1
s_waitcnt vmcnt(0)
v_readfirstlane_b32 s25, v4
s_mov_b32 s26, 0                     ; role: team
s_cmp_eq_u32 s3, 0
s_cselect_b32 s27, 1, 0
s_cmp_lt_u32 s25, {args.get("teamcap","32")}
s_cselect_b32 s27, s27, 0            ; 1 = native team member
s_cmp_eq_u32 s27, 1
s_cbranch_scc1 L_have
v_mov_b32 v3, {DB_WORKER*4}
v_mov_b32 v4, 1
buffer_atomic_add v4, v3, s[{S_DBG}:{S_DBG+3}], 0 offen sc0 sc1
s_waitcnt vmcnt(0)
v_readfirstlane_b32 s25, v4
s_mov_b32 s26, 1
s_cmp_lt_u32 s25, 224
s_cbranch_scc1 L_have
; drafted into the team (fewer than 32 workgroups on XCC 0): head = 31 - (wi-224), mark impure
s_mov_b32 s26, 2
s_cmp_gt_u32 s25, 255
s_cbranch_scc1 L_have
s_sub_u32 s25, 255, s25
s_mov_b32 s26, 0
v_mov_b32 v3, {DB_IMPURE*4}
v_mov_b32 v4, 1
buffer_atomic_add v4, v3, s[{S_DBG}:{S_DBG+3}], 0 offen sc1
s_waitcnt vmcnt(0)
L_have:
s_mov_b64 exec, -1
s_lshl_b32 s26, s26, 16
s_or_b32 s25, s25, s26
v_mov_b32 v5, s25
v_mov_b32 v6, 0
ds_write_b32 v6, v5
s_waitcnt lgkmcnt(0)
L_norank:
s_barrier
v_mov_b32 v6, 0
ds_read_b32 v5, v6
s_waitcnt lgkmcnt(0)
v_readfirstlane_b32 s25, v5
s_barrier
s_and_b32 s21, s25, 0xffff
s_lshr_b32 s26, s25, 16
;;REPSTART
s_cmp_eq_u32 s26, 0
s_cbranch_scc1 L_team
s_cmp_eq_u32 s26, 2
s_cbranch_scc1 L_end
""")
a(f"""
s_cmp_lg_u32 s21, 0
s_cbranch_scc1 L_noinit
v_and_b32 v1, 63, v0
v_lshlrev_b32 v1, 4, v1
v_mov_b32 v4, 0
v_mov_b32 v5, 0
v_mov_b32 v6, 0
v_mov_b32 v7, 0
s_mul_i32 s24, s{S_W}, {FLAGS_BYTES//4}
s_add_u32 s24, s24, {WS_FLAGS}
""")
for i in range(FLAGS_BYTES//4096):
    a(f"buffer_store_dwordx4 v[4:7], v1, s[{S_WS}:{S_WS+3}], s24 offen sc1")
    a("s_add_u32 s24, s24, 1024")
a(f"""s_waitcnt vmcnt(0)
s_barrier
s_cmp_lg_u32 s{S_W}, 0
s_cbranch_scc1 L_noinit
s_mov_b64 exec, 1
v_mov_b32 v3, {DB_INIT*4}
v_mov_b32 v4, 1
buffer_atomic_add v4, v3, s[{S_DBG}:{S_DBG+3}], 0 offen sc1
s_mov_b64 exec, -1
L_noinit:
s_cmp_lt_u32 s21, 96
s_cbranch_scc1 L_t1
s_cmp_lt_u32 s21, 128
s_cbranch_scc1 L_alpha
s_cmp_lt_u32 s21, 164
s_cbranch_scc1 L_ffn
s_mov_b32 s58, s21
s_sub_u32 s21, s21, 164
""")
if "ln" in enable:
    R.wait_init(a, "L_wfail")
    R.role_ln(a, "L_wfail", 0, 60)
a("""s_mov_b32 s21, s58
s_cmp_lt_u32 s21, 196
s_cbranch_scc1 L_b0
s_cmp_lt_u32 s21, 220
s_cbranch_scc1 L_gamma
s_sub_u32 s21, s21, 188
s_branch L_spare
""")
def far(label_from, fn, name):
    a(f"{label_from}:")
    if name in enable: fn()
    a("s_branch L_end")
NTAIL = int(args.get("ntail","2"))
S0 = int(args.get("s0","32"))
R.NA1[0] = 64 - NTAIL
def t1_then_alpha():
    a("s_mov_b32 s59, s21")
    R.role_t1(a, "L_wfail")
    if NTAIL:
        a(f"""s_lshr_b32 s63, s59, 5
        s_and_b32 s21, s59, 31
        s_cmp_ge_u32 s63, {NTAIL}
        s_cbranch_scc1 {"L_ffn2" if S0 < 64 else "L_end"}
        s_add_u32 s63, s63, {64-NTAIL}
        s_and_b32 s21, s59, 31
        s_barrier""")
        R.role_alpha2(a, "L_wfail", one_seg_sgpr=63)
far("L_t1", t1_then_alpha, "t1")
def late(n):
    if n <= 0: return
    a("s_mov_b32 s23, 0")
    R.wait_init(a, "L_wfail")
    a(f"s_and_b32 s44, s21, 31\ns_lshl_b32 s44, s44, 4\ns_add_u32 s44, s44, {FG_QKV + (n-1)*512}")
    R.wg_wait_flags(a, 44, 0, 3, "L_wfail", sleep=8)
DL = int(args.get("late","0"))
PF = int(args.get("pf","1"))
def prefetch(first, nwg):
    if not PF: return
    nw = nwg*4
    order = [(KA_WQ, 576*8192), (KA_WK, 576*8192), (KA_WV, 576*8192), (KA_WO, 4096*1152)]
    a(f"""s_sub_u32 s24, s21, {first}
    s_lshl_b32 s24, s24, 2
    s_add_u32 s24, s24, s{S_W}
    v_and_b32 v1, 63, v0
    v_lshlrev_b32 v1, 4, v1""")
    for ka, nb in order:
        lp = a.label("Lpf"); dn = a.label("Lpf")
        a(f"""s_load_dwordx2 s[26:27], s[0:1], {ka}
        s_waitcnt lgkmcnt(0)
        s_mov_b32 s12, s26
        s_mov_b32 s13, s27
        s_mov_b32 s14, {nb}
        s_mov_b32 s15, 0x20000
        s_lshl_b32 s28, s24, 10
        {lp}:
        s_cmp_ge_u32 s28, {nb}
        s_cbranch_scc1 {dn}
        buffer_load_dwordx4 v[4:7], v1, s[12:15], s28 offen
        s_add_u32 s28, s28, {nw*1024}
        s_waitcnt vmcnt(24)
        s_branch {lp}
        {dn}:""")
    a("s_waitcnt vmcnt(0)")
far("L_alpha", lambda: (prefetch(96, 68), late(DL), a("s_sub_u32 s21, s21, 96"), R.role_alpha(a, "L_wfail")), "alpha")
far("L_ffn", lambda: (prefetch(96, 68), late(DL), a("s_sub_u32 s21, s21, 128"), R.role_ffn(a, "L_wfail", first=0, s0=S0)), "ffn")
if S0 < 64:
    a("L_ffn2:")
    a("s_barrier")
    R.role_ffn(a, "L_wfail", first=S0+1, s0=S0)
    a("s_branch L_end")
far("L_b0", lambda: (a("s_sub_u32 s21, s21, 164"), R.role_reduce(a, "L_wfail", False, npar=4)), "b0")
far("L_gamma", lambda: (a("s_sub_u32 s21, s21, 196"), R.role_reduce(a, "L_wfail", True, npar=3)), "gamma")
a("L_wfail:\ns_branch L_end")
a("L_spare:\ns_branch " + ("L_ffn2" if S0 < 64 else "L_end"))
a("L_team:")
if "team" in enable:
    g = {k: v for k, v in vars(T).items() if k.startswith(("S_", "V_"))}
    S_T0 = T.S_T0
    a(f"""
    s_and_b32 s{S_T0}, s{T.S_W}, 1
    s_lshl_b32 s{S_T0}, s{S_T0}, 5
    s_add_u32 s{T.S_CT}, s{T.S_H}, s{S_T0}
    s_cmp_lt_u32 s{T.S_CT}, 36
    s_cselect_b32 s{S_T0+1}, 1, 0
    s_cmp_lt_u32 s{T.S_W}, 2
    s_cselect_b32 s{T.S_ISRED}, s{S_T0+1}, 0
    s_cselect_b32 s{T.S_ISRST}, 0, s{S_T0+1}
    s_min_u32 s{T.S_CT}, s{T.S_CT}, 35
    s_lshr_b32 s{S_T0}, s{T.S_CT}, 2
    s_and_b32 s{S_T0+1}, s{S_T0}, 1
    s_cmp_eq_u32 s{S_T0+1}, 0
    s_cselect_b32 s{T.S_EARLY}, 1, 0
    s_cmp_eq_u32 s{S_T0}, 8
    s_cselect_b32 s{T.S_EARLY}, {0 if args.get('mod','team12') in ('team9',) else 1}, s{T.S_EARLY}
    """)
    t = T.Team(a, stamps=int(args.get('stamps','0')), sel=tuple(int(x) for x in args.get('sel','0,1,2,3,4,5,6,7').split(',')), nsteps=64, d1=int(args.get('d1','800')), d2=int(args.get('d2','0')), d3=int(args.get('d3','320')), flags=True, spin_cap=3000000, opts=('rep' if report else '')+args.get('topts',''))
    def rep_team(k):
        a(f"""s_memrealtime s[100:101]
        s_waitcnt lgkmcnt(0)
        s_mov_b32 s{S_T0+2}, {WS_REP + 0x8000 + k*64}
        s_mov_b64 exec, 1
        v_mov_b32 v20, s100
        buffer_atomic_umax v20, off, {W}, s{S_T0+2} sc1
        s_mov_b64 exec, -1
        s_waitcnt vmcnt(0)""")
    W = f"s[{S_WS}:{S_WS+3}]"
    def arrive():
        sk = a.label("Lar")
        a(f"""s_barrier
        s_cmp_lg_u32 s{T.S_W}, 0
        s_cbranch_scc1 {sk}
        s_mov_b64 exec, 1
        v_mov_b32 v28, {DB_TEAMBAR*4}
        v_mov_b32 v29, 1
        buffer_atomic_add v29, v28, s[{S_DBG}:{S_DBG+3}], 0 offen sc1
        s_waitcnt vmcnt(0)
        s_mov_b64 exec, -1
        {sk}:""")
    if report: rep_team(0)
    t.consts()
    if report: rep_team(4)
    t.load_weights(stampf=(lambda i: rep_team(4+i)) if report else None, mid=lambda: (t.init_mailboxes('sc1'), arrive()))
    a("s_waitcnt vmcnt(0) lgkmcnt(0)")
    if report: rep_team(2)
    DBG = f"s[{S_DBG}:{S_DBG+3}]"
    lp = a.label("Lsc"); ok = a.label("Lsc")
    a(f"""s_mov_b32 s{T.S_SPIN}, 0
    s_lshl_b32 s{S_T0+1}, s{T.S_H}, 4
    s_add_u32 s{S_T0+1}, s{S_T0+1}, {FG_QKV}
    v_lshrrev_b32 v21, 2, v{T.V_L16}             ; lane*4
    {lp}:
    s_mov_b64 exec, 0xffff
    buffer_load_dword v20, v21, {DBG}, 0 offen sc1
    s_mov_b64 exec, 6
    buffer_load_dword v22, v21, {W}, s{S_T0+1} offen sc1
    buffer_load_dword v23, v21, {W}, s{S_T0+1} offen offset:512 sc1
    s_waitcnt vmcnt(0)
    v_readlane_b32 s{S_T0+2}, v20, {DB_TEAMBAR}
    v_readlane_b32 s{S_T0+3}, v20, {DB_INIT}
    v_readlane_b32 s{S_T0+4}, v20, {DB_IMPURE}
    v_min_u32 v22, v22, v23
    v_cmp_eq_u32 vcc, 0, v22
    s_mov_b64 exec, -1
    s_cmp_lt_u32 s{S_T0+2}, 32
    s_cbranch_scc1 {lp}r
    s_cmp_eq_u32 s{S_T0+3}, 0
    s_cbranch_scc1 {lp}r
    s_cbranch_vccz {ok}
    {lp}r:
    s_add_u32 s{T.S_SPIN}, s{T.S_SPIN}, 1
    s_cmp_gt_u32 s{T.S_SPIN}, {args.get("cap","3000000")}
    s_cbranch_scc1 L_tfail
    s_branch {lp}
    {ok}:
    """)
    wl = a.label("Lwm")
    a(f"s_cmp_lg_u32 s{T.S_W}, 3\ns_cbranch_scc1 {wl}")
    for base in (WS_KF, WS_VF):
        a(f"s_lshl_b32 s{S_T0+1}, s{T.S_H}, 13\ns_add_u32 s{S_T0+1}, s{S_T0+1}, {base}")
        a(f"buffer_load_dword v24, v{T.V_WARM}, {W}, s{S_T0+1} offen sc1")
    a(f"{wl}:")
    a(f"s_barrier\ns_cmp_lg_u32 s{S_T0+4}, 0\ns_cbranch_scc1 L_slowteam")
    if report: rep_team(1)
    t.main_loop("L_tfail", "L_tdone", sc="", tag="f")
    a("L_slowteam:")
    t2 = T.Team(a, stamps=False, nsteps=64, d1=1600, d2=600, d3=320, flags=True, spin_cap=3000000)
    t2.main_loop("L_tfail", "L_tdone", sc="sc1", tag="s")
    a("L_tdone:")
    if report: rep_team(3)
    a(f"""
    s_waitcnt vmcnt(0)
    ;;REPEND
    s_barrier
    s_cmp_lg_u32 s{T.S_W}, 3
    s_cbranch_scc1 L_tfail
    s_lshl_b32 s{S_T0}, s{T.S_H}, 4
    s_add_u32 s{S_T0}, s{S_T0}, {FG_M + 62*512}
    s_mov_b64 exec, 1
    v_mov_b32 v20, 1
    buffer_store_dword v20, off, {W}, s{S_T0} sc1
    s_add_u32 s{S_T0}, s{S_T0}, 512
    buffer_store_dword v20, off, {W}, s{S_T0} sc1
    s_mov_b64 exec, -1
    L_tfail:
    """)
    if int(args.get('stamps','0')):
        a(f"""s_lshl_b32 s{S_T0}, s{T.S_H}, 2
        s_add_u32 s{S_T0}, s{S_T0}, s{T.S_W}
        s_lshl_b32 s{S_T0}, s{S_T0}, 6
        s_add_u32 s{S_T0}, s{S_T0}, {WS_REP + 0x9000}
        v_mov_b32 v3, 0
        s_mov_b64 exec, 1""")
        for q in range(3):
            for i in range(4): a(f"v_mov_b32 v{8+i}, s{min(84+q*4+i,93)}")
            if q == 2: a(f"v_mov_b32 v11, s{T.S_SPIN}")
            a(f"buffer_store_dwordx4 v[8:11], v3, {W}, s{S_T0} offen offset:{q*16}")
            a("s_nop 1")
        a("s_mov_b64 exec, -1")
a("""
L_end:
s_waitcnt vmcnt(0)
s_endpgm
""")
a.raw(kernel_desc(KN))
open(sys.argv[1],"w").write(a.text())
```

```python
import sys
from asmlib import *
from layout import *
import roles as R
import importlib
args = dict(x.split("=") for x in sys.argv[2:])
T = importlib.import_module(args.get("mod","team12"))
KN = args.get("kn", "sequential_preLN__memory_aug_recurrent_mem_tr__dense_activation_relu__prompt_kernel")
enable = set(args.get("roles","team,t1,alpha,ffn,b0,gamma,ln").split(","))
report = int(args.get("report","0"))
R.REPORT[0] = bool(report)
if 'sleep' in args: R.SLEEP[0] = int(args['sleep'])
R.NT['t1'] = args.get('t1nt','nt').replace('-','')
hdr = open("sequential_preLN__memory_aug_recurrent_mem_tr__dense_activation_relu__prompt.s.ref").read().split("\n")
a = Asm()
for l in hdr:
    if l.startswith("; @launch"): a.raw("; @launch grid=(256,1,1) block=(256,1,1) lds=163840")
    elif l.startswith(";"): a.raw(l)
    else: break
a.raw('.amdgcn_target "amdgcn-amd-amdhsa--gfx950"')
a.raw(".text")
a.raw(kernel_header(KN))
S_WS, S_DBG, S_W = 8, 16, 20
S_ROLE = 4
a(f"""
s_cmp_ge_u32 s2, 256
s_cbranch_scc1 L_exit
{"s_memrealtime s[98:99]" if args.get("diag") else ""}
s_load_dwordx2 s[4:5], s[0:1], {KA_DBG}
s_load_dwordx2 s[6:7], s[0:1], {KA_WS}
s_getreg_b32 s3, hwreg(HW_REG_XCC_ID)
s_and_b32 s3, s3, 7
v_lshrrev_b32 v1, 6, v0
s_waitcnt lgkmcnt(0)
s_mov_b32 s{S_WS}, s6
s_mov_b32 s{S_WS+1}, s7
s_mov_b32 s{S_WS+2}, {WS_SIZE}
s_mov_b32 s{S_WS+3}, 0x20000
s_mov_b32 s{S_DBG}, s4
s_mov_b32 s{S_DBG+1}, s5
s_mov_b32 s{S_DBG+2}, 256
s_mov_b32 s{S_DBG+3}, 0x20000
v_readfirstlane_b32 s{S_W}, v1
s_mov_b32 s23, 0
s_cmp_lg_u32 s{S_W}, 0
s_cbranch_scc1 L_norank
s_lshl_b32 s24, s3, 2
v_mov_b32 v3, s24
v_mov_b32 v4, 1
s_mov_b64 exec, 1
buffer_atomic_add v4, v3, s[{S_DBG}:{S_DBG+3}], 0 offen sc0 sc1
s_waitcnt vmcnt(0)
v_readfirstlane_b32 s25, v4
s_mov_b32 s26, 0                     ; role: team
s_cmp_eq_u32 s3, 0
s_cselect_b32 s27, 1, 0
s_cmp_lt_u32 s25, {args.get("teamcap","32")}
s_cselect_b32 s27, s27, 0            ; 1 = native team member
s_cmp_eq_u32 s27, 1
s_cbranch_scc1 L_have
v_mov_b32 v3, {DB_WORKER*4}
v_mov_b32 v4, 1
buffer_atomic_add v4, v3, s[{S_DBG}:{S_DBG+3}], 0 offen sc0 sc1
s_waitcnt vmcnt(0)
v_readfirstlane_b32 s25, v4
s_mov_b32 s26, 1
s_cmp_lt_u32 s25, 224
s_cbranch_scc1 L_have
; drafted into the team (fewer than 32 workgroups on XCC 0): head = 31 - (wi-224), mark impure
s_mov_b32 s26, 2
s_cmp_gt_u32 s25, 255
s_cbranch_scc1 L_have
s_sub_u32 s25, 255, s25
s_mov_b32 s26, 0
v_mov_b32 v3, {DB_IMPURE*4}
v_mov_b32 v4, 1
buffer_atomic_add v4, v3, s[{S_DBG}:{S_DBG+3}], 0 offen sc1
s_waitcnt vmcnt(0)
L_have:
s_mov_b64 exec, -1
s_lshl_b32 s26, s26, 16
s_or_b32 s25, s25, s26
v_mov_b32 v5, s25
v_mov_b32 v6, 0
ds_write_b32 v6, v5
s_waitcnt lgkmcnt(0)
L_norank:
s_barrier
v_mov_b32 v6, 0
ds_read_b32 v5, v6
s_waitcnt lgkmcnt(0)
v_readfirstlane_b32 s25, v5
s_barrier
s_and_b32 s21, s25, 0xffff
s_lshr_b32 s26, s25, 16
;;REPSTART
s_cmp_eq_u32 s26, 0
s_cbranch_scc1 L_team
s_cmp_eq_u32 s26, 2
s_cbranch_scc1 L_end
""")
a(f"""
s_cmp_lg_u32 s21, 0
s_cbranch_scc1 L_noinit
v_and_b32 v1, 63, v0
v_lshlrev_b32 v1, 4, v1
v_mov_b32 v4, 0
v_mov_b32 v5, 0
v_mov_b32 v6, 0
v_mov_b32 v7, 0
s_mul_i32 s24, s{S_W}, {FLAGS_BYTES//4}
s_add_u32 s24, s24, {WS_FLAGS}
""")
for i in range(FLAGS_BYTES//4096):
    a(f"buffer_store_dwordx4 v[4:7], v1, s[{S_WS}:{S_WS+3}], s24 offen sc1")
    a("s_add_u32 s24, s24, 1024")
a(f"""s_waitcnt vmcnt(0)
s_barrier
s_cmp_lg_u32 s{S_W}, 0
s_cbranch_scc1 L_noinit
s_mov_b64 exec, 1
v_mov_b32 v3, {DB_INIT*4}
v_mov_b32 v4, 1
buffer_atomic_add v4, v3, s[{S_DBG}:{S_DBG+3}], 0 offen sc1
s_mov_b64 exec, -1
L_noinit:
s_cmp_lt_u32 s21, 96
s_cbranch_scc1 L_t1
s_cmp_lt_u32 s21, 128
s_cbranch_scc1 L_alpha
s_cmp_lt_u32 s21, 164
s_cbranch_scc1 L_ffn
s_mov_b32 s58, s21
s_sub_u32 s21, s21, 164
""")
if "ln" in enable:
    R.wait_init(a, "L_wfail")
    R.role_ln(a, "L_wfail", 0, 60)
a("""s_mov_b32 s21, s58
s_cmp_lt_u32 s21, 196
s_cbranch_scc1 L_b0
s_cmp_lt_u32 s21, 220
s_cbranch_scc1 L_gamma
s_sub_u32 s21, s21, 188
s_branch L_spare
""")
def far(label_from, fn, name):
    a(f"{label_from}:")
    if name in enable: fn()
    a("s_branch L_end")
NTAIL = int(args.get("ntail","2"))
S0 = int(args.get("s0","32"))
R.NA1[0] = 64 - NTAIL
def t1_then_alpha():
    a("s_mov_b32 s59, s21")
    R.role_t1(a, "L_wfail")
    if NTAIL:
        a(f"""s_lshr_b32 s63, s59, 5
        s_and_b32 s21, s59, 31
        s_cmp_ge_u32 s63, {NTAIL}
        s_cbranch_scc1 {"L_ffn2" if S0 < 64 else "L_end"}
        s_add_u32 s63, s63, {64-NTAIL}
        s_and_b32 s21, s59, 31
        s_barrier""")
        R.role_alpha2(a, "L_wfail", one_seg_sgpr=63)
far("L_t1", t1_then_alpha, "t1")
def late(n):
    if n <= 0: return
    a("s_mov_b32 s23, 0")
    R.wait_init(a, "L_wfail")
    a(f"s_and_b32 s44, s21, 31\ns_lshl_b32 s44, s44, 4\ns_add_u32 s44, s44, {FG_QKV + (n-1)*512}")
    R.wg_wait_flags(a, 44, 0, 3, "L_wfail", sleep=8)
DL = int(args.get("late","0"))
PF = int(args.get("pf","1"))
def prefetch(first, nwg):
    if not PF: return
    nw = nwg*4
    order = [(KA_WQ, 576*8192), (KA_WK, 576*8192), (KA_WV, 576*8192), (KA_WO, 4096*1152)]
    a(f"""s_sub_u32 s24, s21, {first}
    s_lshl_b32 s24, s24, 2
    s_add_u32 s24, s24, s{S_W}
    v_and_b32 v1, 63, v0
    v_lshlrev_b32 v1, 4, v1""")
    for ka, nb in order:
        lp = a.label("Lpf"); dn = a.label("Lpf")
        a(f"""s_load_dwordx2 s[26:27], s[0:1], {ka}
        s_waitcnt lgkmcnt(0)
        s_mov_b32 s12, s26
        s_mov_b32 s13, s27
        s_mov_b32 s14, {nb}
        s_mov_b32 s15, 0x20000
        s_lshl_b32 s28, s24, 10
        {lp}:
        s_cmp_ge_u32 s28, {nb}
        s_cbranch_scc1 {dn}
        buffer_load_dwordx4 v[4:7], v1, s[12:15], s28 offen
        s_add_u32 s28, s28, {nw*1024}
        s_waitcnt vmcnt(24)
        s_branch {lp}
        {dn}:""")
    a("s_waitcnt vmcnt(0)")
far("L_alpha", lambda: (prefetch(96, 68), late(DL), a("s_sub_u32 s21, s21, 96"), R.role_alpha(a, "L_wfail")), "alpha")
far("L_ffn", lambda: (prefetch(96, 68), late(DL), a("s_sub_u32 s21, s21, 128"), R.role_ffn(a, "L_wfail", first=0, s0=S0)), "ffn")
if S0 < 64:
    a("L_ffn2:")
    a("s_barrier")
    R.role_ffn(a, "L_wfail", first=S0+1, s0=S0)
    a("s_branch L_end")
far("L_b0", lambda: (a("s_sub_u32 s21, s21, 164"), R.role_reduce(a, "L_wfail", False, npar=4)), "b0")
far("L_gamma", lambda: (a("s_sub_u32 s21, s21, 196"), R.role_reduce(a, "L_wfail", True, npar=3)), "gamma")
a("L_wfail:\ns_branch L_end")
a("L_spare:\ns_branch " + ("L_ffn2" if S0 < 64 else "L_end"))
a("L_team:")
if "team" in enable:
    g = {k: v for k, v in vars(T).items() if k.startswith(("S_", "V_"))}
    S_T0 = T.S_T0
    a(f"""
    s_and_b32 s{S_T0}, s{T.S_W}, 1
    s_lshl_b32 s{S_T0}, s{S_T0}, 5
    s_add_u32 s{T.S_CT}, s{T.S_H}, s{S_T0}
    s_cmp_lt_u32 s{T.S_CT}, 36
    s_cselect_b32 s{S_T0+1}, 1, 0
    s_cmp_lt_u32 s{T.S_W}, 2
    s_cselect_b32 s{T.S_ISRED}, s{S_T0+1}, 0
    s_cselect_b32 s{T.S_ISRST}, 0, s{S_T0+1}
    s_min_u32 s{T.S_CT}, s{T.S_CT}, 35
    s_lshr_b32 s{S_T0}, s{T.S_CT}, 2
    s_and_b32 s{S_T0+1}, s{S_T0}, 1
    s_cmp_eq_u32 s{S_T0+1}, 0
    s_cselect_b32 s{T.S_EARLY}, 1, 0
    s_cmp_eq_u32 s{S_T0}, 8
    s_cselect_b32 s{T.S_EARLY}, {0 if args.get('mod','team12') in ('team9',) else 1}, s{T.S_EARLY}
    """)
    t = T.Team(a, stamps=int(args.get('stamps','0')), sel=tuple(int(x) for x in args.get('sel','0,1,2,3,4,5,6,7').split(',')), nsteps=64, d1=int(args.get('d1','800')), d2=int(args.get('d2','0')), d3=int(args.get('d3','320')), flags=True, spin_cap=3000000, opts=('rep' if report else '')+args.get('topts',''))
    def rep_team(k):
        a(f"""s_memrealtime s[100:101]
        s_waitcnt lgkmcnt(0)
        s_mov_b32 s{S_T0+2}, {WS_REP + 0x8000 + k*64}
        s_mov_b64 exec, 1
        v_mov_b32 v20, s100
        buffer_atomic_umax v20, off, {W}, s{S_T0+2} sc1
        s_mov_b64 exec, -1
        s_waitcnt vmcnt(0)""")
    W = f"s[{S_WS}:{S_WS+3}]"
    def diag(k, reg=None):
        if not args.get("diag"): return
        if reg is None:
            a("s_memrealtime s[100:101]\ns_waitcnt lgkmcnt(0)"); reg = "s100"
        a(f"""s_mov_b64 exec, 1
        v_mov_b32 v20, {reg}
        v_mov_b32 v21, {k*4}
        buffer_atomic_umax v20, v21, s[{S_DBG}:{S_DBG+3}], 0 offen sc1
        s_mov_b64 exec, -1
        s_waitcnt vmcnt(0)""")
    def arrive():
        sk = a.label("Lar")
        a(f"""s_barrier
        s_cmp_lg_u32 s{T.S_W}, 0
        s_cbranch_scc1 {sk}
        s_mov_b64 exec, 1
        v_mov_b32 v28, {DB_TEAMBAR*4}
        v_mov_b32 v29, 1
        buffer_atomic_add v29, v28, s[{S_DBG}:{S_DBG+3}], 0 offen sc1
        s_waitcnt vmcnt(0)
        s_mov_b64 exec, -1
        {sk}:""")
    if report: rep_team(0)
    diag(12, "s98")
    t.consts()
    if report: rep_team(4)
    t.load_weights(stampf=(lambda i: rep_team(4+i)) if report else None, mid=lambda: (t.init_mailboxes('sc1'), arrive()))
    a("s_waitcnt vmcnt(0) lgkmcnt(0)")
    if report: rep_team(2)
    DBG = f"s[{S_DBG}:{S_DBG+3}]"
    lp = a.label("Lsc"); ok = a.label("Lsc")
    a(f"""s_mov_b32 s{T.S_SPIN}, 0
    s_lshl_b32 s{S_T0+1}, s{T.S_H}, 4
    s_add_u32 s{S_T0+1}, s{S_T0+1}, {FG_QKV}
    v_lshrrev_b32 v21, 2, v{T.V_L16}             ; lane*4
    {lp}:
    s_mov_b64 exec, 0xffff
    buffer_load_dword v20, v21, {DBG}, 0 offen sc1
    s_mov_b64 exec, 6
    buffer_load_dword v22, v21, {W}, s{S_T0+1} offen sc1
    buffer_load_dword v23, v21, {W}, s{S_T0+1} offen offset:512 sc1
    s_waitcnt vmcnt(0)
    v_readlane_b32 s{S_T0+2}, v20, {DB_TEAMBAR}
    v_readlane_b32 s{S_T0+3}, v20, {DB_INIT}
    v_readlane_b32 s{S_T0+4}, v20, {DB_IMPURE}
    v_min_u32 v22, v22, v23
    v_cmp_eq_u32 vcc, 0, v22
    s_mov_b64 exec, -1
    s_cmp_lt_u32 s{S_T0+2}, 32
    s_cbranch_scc1 {lp}r
    s_cmp_eq_u32 s{S_T0+3}, 0
    s_cbranch_scc1 {lp}r
    s_cbranch_vccz {ok}
    {lp}r:
    s_add_u32 s{T.S_SPIN}, s{T.S_SPIN}, 1
    s_cmp_gt_u32 s{T.S_SPIN}, {args.get("cap","3000000")}
    s_cbranch_scc1 L_tfail
    s_branch {lp}
    {ok}:
    """)
    wl = a.label("Lwm")
    a(f"s_cmp_lg_u32 s{T.S_W}, 3\ns_cbranch_scc1 {wl}")
    for base in (WS_KF, WS_VF):
        a(f"s_lshl_b32 s{S_T0+1}, s{T.S_H}, 13\ns_add_u32 s{S_T0+1}, s{S_T0+1}, {base}")
        a(f"buffer_load_dword v24, v{T.V_WARM}, {W}, s{S_T0+1} offen sc1")
    a(f"{wl}:")
    a(f"s_barrier\ns_cmp_lg_u32 s{S_T0+4}, 0\ns_cbranch_scc1 L_slowteam")
    if report: rep_team(1)
    diag(13)
    t.main_loop("L_tfail", "L_tdone", sc="", tag="f")
    a("L_slowteam:")
    t2 = T.Team(a, stamps=False, nsteps=64, d1=1600, d2=600, d3=320, flags=True, spin_cap=3000000)
    t2.main_loop("L_tfail", "L_tdone", sc="sc1", tag="s")
    a("L_tdone:")
    if report: rep_team(3)
    diag(14)
    a(f"""
    s_waitcnt vmcnt(0)
    ;;REPEND
    s_barrier
    s_cmp_lg_u32 s{T.S_W}, 3
    s_cbranch_scc1 L_tfail
    s_lshl_b32 s{S_T0}, s{T.S_H}, 4
    s_add_u32 s{S_T0}, s{S_T0}, {FG_M + 62*512}
    s_mov_b64 exec, 1
    v_mov_b32 v20, 1
    buffer_store_dword v20, off, {W}, s{S_T0} sc1
    s_add_u32 s{S_T0}, s{S_T0}, 512
    buffer_store_dword v20, off, {W}, s{S_T0} sc1
    s_mov_b64 exec, -1
    L_tfail:
    """)
    if int(args.get('stamps','0')):
        a(f"""s_lshl_b32 s{S_T0}, s{T.S_H}, 2
        s_add_u32 s{S_T0}, s{S_T0}, s{T.S_W}
        s_lshl_b32 s{S_T0}, s{S_T0}, 6
        s_add_u32 s{S_T0}, s{S_T0}, {WS_REP + 0x9000}
        v_mov_b32 v3, 0
        s_mov_b64 exec, 1""")
        for q in range(3):
            for i in range(4): a(f"v_mov_b32 v{8+i}, s{min(84+q*4+i,93)}")
            if q == 2: a(f"v_mov_b32 v11, s{T.S_SPIN}")
            a(f"buffer_store_dwordx4 v[8:11], v3, {W}, s{S_T0} offen offset:{q*16}")
            a("s_nop 1")
        a("s_mov_b64 exec, -1")
a("""
L_end:
s_waitcnt vmcnt(0)
""")
if args.get("diag"):
    a(f"""s_memrealtime s[100:101]
    s_waitcnt lgkmcnt(0)
    s_mov_b64 exec, 1
    v_mov_b32 v20, s100
    v_mov_b32 v21, 60
    buffer_atomic_umax v20, v21, s[16:19], 0 offen sc1
    s_waitcnt vmcnt(0)""")
a("L_exit:\ns_endpgm")
a.raw(kernel_desc(KN))
open(sys.argv[1],"w").write(a.text())
```

```python
import sys
from asmlib import *
from layout import *
import roles as R
import importlib
args = dict(x.split("=") for x in sys.argv[2:])
T = importlib.import_module(args.get("mod","team12"))
KN = args.get("kn", "sequential_preLN__memory_aug_recurrent_mem_tr__dense_activation_relu__prompt_kernel")
enable = set(args.get("roles","team,t1,alpha,ffn,b0,gamma,ln").split(","))
report = int(args.get("report","0"))
R.REPORT[0] = bool(report)
R.OUTF[0] = args.get('outf','')
if 'sleep' in args: R.SLEEP[0] = int(args['sleep'])
R.NT['t1'] = args.get('t1nt','nt').replace('-','')
hdr = open("sequential_preLN__memory_aug_recurrent_mem_tr__dense_activation_relu__prompt.s.ref").read().split("\n")
a = Asm()
for l in hdr:
    if l.startswith("; @launch"): a.raw("; @launch grid=(256,1,1) block=(256,1,1) lds=163840")
    elif l.startswith(";"): a.raw(l)
    else: break
a.raw('.amdgcn_target "amdgcn-amd-amdhsa--gfx950"')
a.raw(".text")
a.raw(kernel_header(KN))
S_WS, S_DBG, S_W = 8, 16, 20
S_ROLE = 4
a(f"""
s_cmp_ge_u32 s2, 256
s_cbranch_scc1 L_exit
{"s_memrealtime s[98:99]" if args.get("diag") else ""}
;;CODEPF
s_load_dwordx2 s[4:5], s[0:1], {KA_DBG}
s_load_dwordx2 s[6:7], s[0:1], {KA_WS}
s_getreg_b32 s3, hwreg(HW_REG_XCC_ID)
s_and_b32 s3, s3, 7
v_lshrrev_b32 v1, 6, v0
s_waitcnt lgkmcnt(0)
s_mov_b32 s{S_WS}, s6
s_mov_b32 s{S_WS+1}, s7
s_mov_b32 s{S_WS+2}, {WS_SIZE}
s_mov_b32 s{S_WS+3}, 0x20000
s_mov_b32 s{S_DBG}, s4
s_mov_b32 s{S_DBG+1}, s5
s_mov_b32 s{S_DBG+2}, 256
s_mov_b32 s{S_DBG+3}, 0x20000
v_readfirstlane_b32 s{S_W}, v1
s_mov_b32 s23, 0
s_cmp_lg_u32 s{S_W}, 0
s_cbranch_scc1 L_norank
s_lshl_b32 s24, s3, 2
v_mov_b32 v3, s24
v_mov_b32 v4, 1
s_mov_b64 exec, 1
buffer_atomic_add v4, v3, s[{S_DBG}:{S_DBG+3}], 0 offen sc0 sc1
s_waitcnt vmcnt(0)
v_readfirstlane_b32 s25, v4
s_mov_b32 s26, 0                     ; role: team
s_cmp_eq_u32 s3, 0
s_cselect_b32 s27, 1, 0
s_cmp_lt_u32 s25, {args.get("teamcap","32")}
s_cselect_b32 s27, s27, 0            ; 1 = native team member
s_cmp_eq_u32 s27, 1
s_cbranch_scc1 L_have
v_mov_b32 v3, {DB_WORKER*4}
v_mov_b32 v4, 1
buffer_atomic_add v4, v3, s[{S_DBG}:{S_DBG+3}], 0 offen sc0 sc1
s_waitcnt vmcnt(0)
v_readfirstlane_b32 s25, v4
s_mov_b32 s26, 1
s_cmp_lt_u32 s25, 224
s_cbranch_scc1 L_have
; drafted into the team (fewer than 32 workgroups on XCC 0): head = 31 - (wi-224), mark impure
s_mov_b32 s26, 2
s_cmp_gt_u32 s25, 255
s_cbranch_scc1 L_have
s_sub_u32 s25, 255, s25
s_mov_b32 s26, 0
v_mov_b32 v3, {DB_IMPURE*4}
v_mov_b32 v4, 1
buffer_atomic_add v4, v3, s[{S_DBG}:{S_DBG+3}], 0 offen sc1
s_waitcnt vmcnt(0)
L_have:
s_mov_b64 exec, -1
s_lshl_b32 s26, s26, 16
s_or_b32 s25, s25, s26
v_mov_b32 v5, s25
v_mov_b32 v6, 0
ds_write_b32 v6, v5
s_waitcnt lgkmcnt(0)
L_norank:
s_barrier
v_mov_b32 v6, 0
ds_read_b32 v5, v6
s_waitcnt lgkmcnt(0)
v_readfirstlane_b32 s25, v5
s_barrier
s_and_b32 s21, s25, 0xffff
s_lshr_b32 s26, s25, 16
;;REPSTART
s_cmp_eq_u32 s26, 0
s_cbranch_scc1 L_team
s_cmp_eq_u32 s26, 2
s_cbranch_scc1 L_end
""")
a(f"""
s_cmp_lg_u32 s21, 0
s_cbranch_scc1 L_noinit
v_and_b32 v1, 63, v0
v_lshlrev_b32 v1, 4, v1
v_mov_b32 v4, 0
v_mov_b32 v5, 0
v_mov_b32 v6, 0
v_mov_b32 v7, 0
s_mul_i32 s24, s{S_W}, {FLAGS_BYTES//4}
s_add_u32 s24, s24, {WS_FLAGS}
""")
for i in range(FLAGS_BYTES//4096):
    a(f"buffer_store_dwordx4 v[4:7], v1, s[{S_WS}:{S_WS+3}], s24 offen sc1")
    a("s_add_u32 s24, s24, 1024")
a(f"""s_waitcnt vmcnt(0)
s_barrier
s_cmp_lg_u32 s{S_W}, 0
s_cbranch_scc1 L_noinit
s_mov_b64 exec, 1
v_mov_b32 v3, {DB_INIT*4}
v_mov_b32 v4, 1
buffer_atomic_add v4, v3, s[{S_DBG}:{S_DBG+3}], 0 offen sc1
s_mov_b64 exec, -1
L_noinit:
s_cmp_lt_u32 s21, 96
s_cbranch_scc1 L_t1
s_cmp_lt_u32 s21, 128
s_cbranch_scc1 L_alpha
s_cmp_lt_u32 s21, 164
s_cbranch_scc1 L_ffn
s_mov_b32 s58, s21
s_sub_u32 s21, s21, 164
""")
if "ln" in enable:
    R.wait_init(a, "L_wfail")
    R.role_ln(a, "L_wfail", 0, 60)
a("""s_mov_b32 s21, s58
s_cmp_lt_u32 s21, 196
s_cbranch_scc1 L_b0
s_cmp_lt_u32 s21, 220
s_cbranch_scc1 L_gamma
s_sub_u32 s21, s21, 188
s_branch L_spare
""")
def far(label_from, fn, name):
    a(f"{label_from}:")
    if name in enable: fn()
    a("s_branch L_end")
NTAIL = int(args.get("ntail","2"))
S0 = int(args.get("s0","32"))
R.NA1[0] = 64 - NTAIL
def t1_then_alpha():
    a("s_mov_b32 s59, s21")
    R.role_t1(a, "L_wfail")
    if NTAIL:
        a(f"""s_lshr_b32 s63, s59, 5
        s_and_b32 s21, s59, 31
        s_cmp_ge_u32 s63, {NTAIL}
        s_cbranch_scc1 {"L_ffn2" if S0 < 64 else "L_end"}
        s_add_u32 s63, s63, {64-NTAIL}
        s_and_b32 s21, s59, 31
        s_barrier""")
        R.role_alpha2(a, "L_wfail", one_seg_sgpr=63)
far("L_t1", t1_then_alpha, "t1")
def late(n):
    if n <= 0: return
    a("s_mov_b32 s23, 0")
    R.wait_init(a, "L_wfail")
    a(f"s_and_b32 s44, s21, 31\ns_lshl_b32 s44, s44, 4\ns_add_u32 s44, s44, {FG_QKV + (n-1)*512}")
    R.wg_wait_flags(a, 44, 0, 3, "L_wfail", sleep=8)
DL = int(args.get("late","0"))
PF = int(args.get("pf","1"))
def prefetch(first, nwg):
    if not PF: return
    nw = nwg*4
    order = [(KA_WQ, 576*8192), (KA_WK, 576*8192), (KA_WV, 576*8192), (KA_WO, 4096*1152)]
    a(f"""s_sub_u32 s24, s21, {first}
    s_lshl_b32 s24, s24, 2
    s_add_u32 s24, s24, s{S_W}
    v_and_b32 v1, 63, v0
    v_lshlrev_b32 v1, 4, v1""")
    for ka, nb in order:
        lp = a.label("Lpf"); dn = a.label("Lpf")
        a(f"""s_load_dwordx2 s[26:27], s[0:1], {ka}
        s_waitcnt lgkmcnt(0)
        s_mov_b32 s12, s26
        s_mov_b32 s13, s27
        s_mov_b32 s14, {nb}
        s_mov_b32 s15, 0x20000
        s_lshl_b32 s28, s24, 10
        {lp}:
        s_cmp_ge_u32 s28, {nb}
        s_cbranch_scc1 {dn}
        buffer_load_dwordx4 v[4:7], v1, s[12:15], s28 offen
        s_add_u32 s28, s28, {nw*1024}
        s_waitcnt vmcnt(24)
        s_branch {lp}
        {dn}:""")
    a("s_waitcnt vmcnt(0)")
far("L_alpha", lambda: (prefetch(96, 68), late(DL), a("s_sub_u32 s21, s21, 96"), R.role_alpha(a, "L_wfail")), "alpha")
far("L_ffn", lambda: (prefetch(96, 68), late(DL), a("s_sub_u32 s21, s21, 128"), R.role_ffn(a, "L_wfail", first=0, s0=S0)), "ffn")
if S0 < 64:
    a("L_ffn2:")
    a("s_barrier")
    R.role_ffn(a, "L_wfail", first=S0+1, s0=S0)
    a("s_branch L_end")
far("L_b0", lambda: (a("s_sub_u32 s21, s21, 164"), R.role_reduce(a, "L_wfail", False, npar=4)), "b0")
far("L_gamma", lambda: (a("s_sub_u32 s21, s21, 196"), R.role_reduce(a, "L_wfail", True, npar=3)), "gamma")
a("L_wfail:\ns_branch L_end")
a("L_spare:\ns_branch " + ("L_ffn2" if S0 < 64 else "L_end"))
a("L_team:")
if "team" in enable:
    g = {k: v for k, v in vars(T).items() if k.startswith(("S_", "V_"))}
    S_T0 = T.S_T0
    a(f"""
    s_and_b32 s{S_T0}, s{T.S_W}, 1
    s_lshl_b32 s{S_T0}, s{S_T0}, 5
    s_add_u32 s{T.S_CT}, s{T.S_H}, s{S_T0}
    s_cmp_lt_u32 s{T.S_CT}, 36
    s_cselect_b32 s{S_T0+1}, 1, 0
    s_cmp_lt_u32 s{T.S_W}, 2
    s_cselect_b32 s{T.S_ISRED}, s{S_T0+1}, 0
    s_cselect_b32 s{T.S_ISRST}, 0, s{S_T0+1}
    s_min_u32 s{T.S_CT}, s{T.S_CT}, 35
    s_lshr_b32 s{S_T0}, s{T.S_CT}, 2
    s_and_b32 s{S_T0+1}, s{S_T0}, 1
    s_cmp_eq_u32 s{S_T0+1}, 0
    s_cselect_b32 s{T.S_EARLY}, 1, 0
    s_cmp_eq_u32 s{S_T0}, 8
    s_cselect_b32 s{T.S_EARLY}, {0 if args.get('mod','team12') in ('team9',) else 1}, s{T.S_EARLY}
    """)
    t = T.Team(a, stamps=int(args.get('stamps','0')), sel=tuple(int(x) for x in args.get('sel','0,1,2,3,4,5,6,7').split(',')), nsteps=64, d1=int(args.get('d1','800')), d2=int(args.get('d2','0')), d3=int(args.get('d3','320')), **({'d4': int(args['d4'])} if 'd4' in args else {}), flags=True, spin_cap=3000000, opts=('rep' if report else '')+args.get('topts',''))
    def rep_team(k):
        a(f"""s_memrealtime s[100:101]
        s_waitcnt lgkmcnt(0)
        s_mov_b32 s{S_T0+2}, {WS_REP + 0x8000 + k*64}
        s_mov_b64 exec, 1
        v_mov_b32 v20, s100
        buffer_atomic_umax v20, off, {W}, s{S_T0+2} sc1
        s_mov_b64 exec, -1
        s_waitcnt vmcnt(0)""")
    W = f"s[{S_WS}:{S_WS+3}]"
    def diag(k, reg=None):
        if not args.get("diag"): return
        if reg is None:
            a("s_memrealtime s[100:101]\ns_waitcnt lgkmcnt(0)"); reg = "s100"
        a(f"""s_mov_b64 exec, 1
        v_mov_b32 v20, {reg}
        v_mov_b32 v21, {k*4}
        buffer_atomic_umax v20, v21, s[{S_DBG}:{S_DBG+3}], 0 offen sc1
        s_mov_b64 exec, -1
        s_waitcnt vmcnt(0)""")
    def arrive():
        sk = a.label("Lar")
        a(f"""s_barrier
        s_cmp_lg_u32 s{T.S_W}, 0
        s_cbranch_scc1 {sk}
        s_mov_b64 exec, 1
        v_mov_b32 v28, {DB_TEAMBAR*4}
        v_mov_b32 v29, 1
        buffer_atomic_add v29, v28, s[{S_DBG}:{S_DBG+3}], 0 offen sc1
        s_waitcnt vmcnt(0)
        s_mov_b64 exec, -1
        {sk}:""")
    if report: rep_team(0)
    diag(12, "s98")
    t.consts()
    if report: rep_team(4)
    t.load_weights(stampf=(lambda i: rep_team(4+i)) if report else None, mid=lambda: (t.init_mailboxes('sc1'), arrive()))
    a("s_waitcnt vmcnt(0) lgkmcnt(0)")
    if report: rep_team(2)
    DBG = f"s[{S_DBG}:{S_DBG+3}]"
    lp = a.label("Lsc"); ok = a.label("Lsc")
    a(f"""s_mov_b32 s{T.S_SPIN}, 0
    s_lshl_b32 s{S_T0+1}, s{T.S_H}, 4
    s_add_u32 s{S_T0+1}, s{S_T0+1}, {FG_QKV}
    v_lshrrev_b32 v21, 2, v{T.V_L16}             ; lane*4
    {lp}:
    s_mov_b64 exec, 0xffff
    buffer_load_dword v20, v21, {DBG}, 0 offen sc1
    s_mov_b64 exec, 6
    buffer_load_dword v22, v21, {W}, s{S_T0+1} offen sc1
    buffer_load_dword v23, v21, {W}, s{S_T0+1} offen offset:512 sc1
    s_waitcnt vmcnt(0)
    v_readlane_b32 s{S_T0+2}, v20, {DB_TEAMBAR}
    v_readlane_b32 s{S_T0+3}, v20, {DB_INIT}
    v_readlane_b32 s{S_T0+4}, v20, {DB_IMPURE}
    v_min_u32 v22, v22, v23
    v_cmp_eq_u32 vcc, 0, v22
    s_mov_b64 exec, -1
    s_cmp_lt_u32 s{S_T0+2}, 32
    s_cbranch_scc1 {lp}r
    s_cmp_eq_u32 s{S_T0+3}, 0
    s_cbranch_scc1 {lp}r
    s_cbranch_vccz {ok}
    {lp}r:
    s_add_u32 s{T.S_SPIN}, s{T.S_SPIN}, 1
    s_cmp_gt_u32 s{T.S_SPIN}, {args.get("cap","3000000")}
    s_cbranch_scc1 L_tfail
    s_branch {lp}
    {ok}:
    """)
    wl = a.label("Lwm")
    a(f"s_cmp_lg_u32 s{T.S_W}, 3\ns_cbranch_scc1 {wl}")
    for base in (WS_KF, WS_VF):
        a(f"s_lshl_b32 s{S_T0+1}, s{T.S_H}, 13\ns_add_u32 s{S_T0+1}, s{S_T0+1}, {base}")
        a(f"buffer_load_dword v24, v{T.V_WARM}, {W}, s{S_T0+1} offen sc1")
    a(f"{wl}:")
    a(f"s_barrier\ns_cmp_lg_u32 s{S_T0+4}, 0\ns_cbranch_scc1 L_slowteam")
    if report: rep_team(1)
    diag(13)
    t.main_loop("L_tfail", "L_tdone", sc="", tag="f")
    a("L_slowteam:")
    t2 = T.Team(a, stamps=False, nsteps=64, d1=1600, d2=600, d3=320, flags=True, spin_cap=3000000)
    t2.main_loop("L_tfail", "L_tdone", sc="sc1", tag="s")
    a("L_tdone:")
    if report: rep_team(3)
    diag(14)
    a(f"""
    s_waitcnt vmcnt(0)
    ;;REPEND
    s_barrier
    s_cmp_lg_u32 s{T.S_W}, 3
    s_cbranch_scc1 L_tfail
    s_lshl_b32 s{S_T0}, s{T.S_H}, 4
    s_add_u32 s{S_T0}, s{S_T0}, {FG_M + 62*512}
    s_mov_b64 exec, 1
    v_mov_b32 v20, 1
    buffer_store_dword v20, off, {W}, s{S_T0} sc1
    s_add_u32 s{S_T0}, s{S_T0}, 512
    buffer_store_dword v20, off, {W}, s{S_T0} sc1
    s_mov_b64 exec, -1
    L_tfail:
    """)
    if int(args.get('stamps','0')):
        a(f"""s_lshl_b32 s{S_T0}, s{T.S_H}, 2
        s_add_u32 s{S_T0}, s{S_T0}, s{T.S_W}
        s_lshl_b32 s{S_T0}, s{S_T0}, 6
        s_add_u32 s{S_T0}, s{S_T0}, {WS_REP + 0x9000}
        v_mov_b32 v3, 0
        s_mov_b64 exec, 1""")
        for q in range(3):
            for i in range(4): a(f"v_mov_b32 v{8+i}, s{min(84+q*4+i,93)}")
            if q == 2: a(f"v_mov_b32 v11, s{T.S_SPIN}")
            a(f"buffer_store_dwordx4 v[8:11], v3, {W}, s{S_T0} offen offset:{q*16}")
            a("s_nop 1")
        a("s_mov_b64 exec, -1")
a("""
L_end:
s_waitcnt vmcnt(0)
""")
if args.get("diag"):
    a(f"""s_memrealtime s[100:101]
    s_waitcnt lgkmcnt(0)
    s_mov_b64 exec, 1
    v_mov_b32 v20, s100
    v_mov_b32 v21, 60
    buffer_atomic_umax v20, v21, s[16:19], 0 offen sc1
    s_waitcnt vmcnt(0)""")
a("L_exit:\ns_endpgm")
a.raw(kernel_desc(KN))
txt = a.text()
if int(args.get("codepf","1")):
    pf = """    s_getpc_b64 s[30:31]
L_pcref:
    v_lshrrev_b32 v2, 6, v0
    s_lshr_b32 s32, s2, 3
    s_lshl_b32 s32, s32, 2
    v_add_u32 v2, s32, v2
    s_mov_b32 s33, (L_exit - L_pcref) / 1024
    v_cmp_le_u32 vcc, s33, v2
    v_subrev_u32 v3, s33, v2
    s_nop 0
    v_cndmask_b32 v2, v2, v3, vcc
    v_cmp_le_u32 vcc, s33, v2
    v_subrev_u32 v3, s33, v2
    s_nop 0
    v_cndmask_b32 v2, v2, v3, vcc
    v_min_u32 v2, s33, v2
    v_lshlrev_b32 v2, 10, v2
    v_and_b32 v3, 63, v0
    v_lshlrev_b32 v3, 4, v3
    v_add_u32 v2, v2, v3
    v_min_u32 v2, (L_exit - L_pcref - 16), v2
    global_load_dwordx4 v[200:203], v2, s[30:31]
"""
    txt = txt.replace("    ;;CODEPF\n", pf)
open(sys.argv[1],"w").write(txt)
```

```python
from asmlib import *
from layout import *
import struct

S_WS = 8; S_TMP = 12; S_DBG = 16
S_W = 20; S_IDX = 21; S_SEG = 22; S_SPIN = 23
S_A = 24
S_IO = 40
S_B = 44
WSR = f"s[{S_WS}:{S_WS+3}]"
TMPR = f"s[{S_TMP}:{S_TMP+3}]"
IOR = f"s[{S_IO}:{S_IO+3}]"
def v4(b): return f"v[{b}:{b+3}]"
def v2(b): return f"v[{b}:{b+1}]"
def f2h(x): return struct.unpack("<I", struct.pack("<f", x))[0]
CAP = 3000000

def make_srd(a, dst, ka_off, nbytes):
    a(f"""s_load_dwordx2 s[{S_A}:{S_A+1}], s[0:1], {ka_off}
    s_waitcnt lgkmcnt(0)
    s_mov_b32 s{dst}, s{S_A}
    s_mov_b32 s{dst+1}, s{S_A+1}
    s_mov_b32 s{dst+2}, {nbytes}
    s_mov_b32 s{dst+3}, 0x20000""")

def wait_flags(a, s_off, lo, hi, L_fail, vt=250, sleep=2):
    lp = a.label("Lwf"); ok = a.label("Lwf")
    mask = ((1 << hi) - 1) ^ ((1 << lo) - 1)
    a(f"""s_mov_b32 exec_lo, {mask & 0xffffffff:#x}
    s_mov_b32 exec_hi, {mask >> 32:#x}
    v_mbcnt_lo_u32_b32 v{vt}, -1, 0
    v_mbcnt_hi_u32_b32 v{vt}, -1, v{vt}
    v_lshlrev_b32 v{vt}, 2, v{vt}
    {lp}:
    buffer_load_dword v{vt+1}, v{vt}, {WSR}, s{s_off} offen sc1
    s_waitcnt vmcnt(0)
    v_cmp_eq_u32 vcc, 0, v{vt+1}
    s_cbranch_vccz {ok}
    s_add_u32 s{S_SPIN}, s{S_SPIN}, 1
    s_cmp_gt_u32 s{S_SPIN}, {CAP}
    s_cbranch_scc1 {L_fail}
    {("s_sleep %d" % (sleep if SLEEP[0] is None else SLEEP[0])) if (sleep if SLEEP[0] is None else SLEEP[0]) else ""}
    s_branch {lp}
    {ok}:
    s_mov_b64 exec, -1""")

def wg_wait_flags(a, s_off, lo, hi, L_fail, sleep=2):
    sk = a.label("Lww")
    a(f"s_cmp_lg_u32 s{S_W}, 0\ns_cbranch_scc1 {sk}")
    wait_flags(a, s_off, lo, hi, L_fail, sleep=sleep)
    a(f"{sk}:\ns_barrier")

REPORT = [False]
SLEEP = [None]
OUTF = ['']
ASLEEP = [8]
NA1 = [64]
def stamp_max(a, stage, vt):
    if not REPORT[0]: return
    a(f"""s_memrealtime s[60:61]
    s_waitcnt lgkmcnt(0)
    s_lshl_b32 s62, s{S_SEG}, 6
    s_add_u32 s62, s62, {WS_REP + stage*4096}
    s_mov_b64 exec, 1
    v_mov_b32 v{vt}, s60
    buffer_atomic_umax v{vt}, off, {WSR}, s62 sc1
    s_mov_b64 exec, -1""")
def signal(a, s_off, vt=250, stage=7):
    stamp_max(a, stage, vt)
    a(f"""s_mov_b64 exec, 1
    v_mov_b32 v{vt}, 1
    buffer_store_dword v{vt}, off, {WSR}, s{s_off} sc1
    s_mov_b64 exec, -1""")

def flag_addr(a, dst, base, s_seg, seg_stride, s_idx=None, idx_stride=0, const=0):
    a(f"s_mul_i32 s{dst}, s{s_seg}, {seg_stride}")
    a(f"s_add_u32 s{dst}, s{dst}, {base + const}")
    if s_idx is not None:
        a(f"s_mul_i32 s{S_A+13}, s{s_idx}, {idx_stride}")
        a(f"s_add_u32 s{dst}, s{dst}, s{S_A+13}")

def wait_init(a, L_fail):
    lp = a.label("Lwi"); ok = a.label("Lwi")
    a(f"""s_mov_b64 exec, 1
    v_mov_b32 v250, {DB_INIT*4}
    {lp}:
    buffer_load_dword v251, v250, s[{S_DBG}:{S_DBG+3}], 0 offen sc1
    s_waitcnt vmcnt(0)
    v_readfirstlane_b32 s{S_A+14}, v251
    s_cmp_lg_u32 s{S_A+14}, 0
    s_cbranch_scc1 {ok}
    s_add_u32 s{S_SPIN}, s{S_SPIN}, 1
    s_cmp_gt_u32 s{S_SPIN}, {CAP}
    s_cbranch_scc1 {L_fail}
    s_sleep 1
    s_branch {lp}
    {ok}:
    s_mov_b64 exec, -1""")

def round_bf16(a, dst, src, tmp):
    a(f"v_cvt_pk_bf16_f32 v{tmp}, v{src}, v{src}")
    a(f"v_lshlrev_b32 v{dst}, 16, v{tmp}")

def reduce8(a, r, t):
    for mod in ("quad_perm:[1,0,3,2]", "quad_perm:[2,3,0,1]", "row_half_mirror"):
        a("s_nop 1")
        a(f"v_add_f32_dpp v{r}, v{r}, v{r} {mod} row_mask:0xf bank_mask:0xf")

def role_ln(a, L_fail, first, stride):
    make_srd(a, S_IO, KA_X, 2048*1152)
    lp = a.label("Lln"); done = a.label("Lln")
    a(f"""
    v_and_b32 v1, 63, v0
    v_lshrrev_b32 v2, 3, v1            ; l>>3
    v_and_b32 v3, 7, v1                ; part
    s_lshl_b32 s{S_A}, s{S_W}, 3
    v_add_u32 v4, s{S_A}, v2           ; token
    v_mul_u32_u24 v5, 1152, v4
    v_lshlrev_b32 v6, 4, v3
    v_add_u32 v5, v5, v6
    v_lshrrev_b32 v6, 1, v3
    v_lshlrev_b32 v7, 10, v6
    v_and_b32 v8, 1, v3
    v_lshlrev_b32 v9, 9, v8
    v_lshlrev_b32 v10, 4, v4
    v_add3_u32 v7, v7, v9, v10
    v_lshrrev_b32 v9, 2, v4
    v_mul_u32_u24 v9, 4608, v9
    v_and_b32 v10, 3, v4
    v_lshlrev_b32 v10, 4, v10
    v_lshlrev_b32 v11, 7, v6
    v_lshlrev_b32 v12, 3, v8
    v_add3_u32 v9, v9, v10, v11
    v_add_u32 v9, v9, v12
    s_mov_b32 s{S_SEG}, s{S_IDX}
    {lp}:
    s_cmp_ge_u32 s{S_SEG}, 64
    s_cbranch_scc1 {done}
    s_mul_i32 s{S_A}, s{S_SEG}, {SEGB}
    """)
    X = 32; F = 80
    for i in range(9):
        a(f"buffer_load_dwordx4 {v4(X+4*i)}, v5, {IOR}, s{S_A} offen offset:{i*128} nt")
    a(f"s_add_u32 s{S_A+1}, s{S_A}, {WS_XP}")
    a(f"s_add_u32 s{S_A+2}, s{S_A+1}, 4096")
    a("s_waitcnt vmcnt(0)")
    for i in range(9):
        so = S_A+1 if i < 8 else S_A+2
        off = (i % 8)*512
        a(f"buffer_store_dwordx2 {v2(X+4*i)}, v9, {WSR}, s{so} offen offset:{off} sc1")
        a(f"buffer_store_dwordx2 {v2(X+4*i+2)}, v9, {WSR}, s{so} offen offset:{off+64} sc1")
    for k in range(36):
        a(f"v_lshlrev_b32 v{F+2*k}, 16, v{X+k}")
        a(f"v_and_b32 v{F+2*k+1}, 0xffff0000, v{X+k}")
    a(f"v_pk_add_f32 v[14:15], {v2(F)}, {v2(F+2)}")
    for k in range(2, 36):
        a(f"v_pk_add_f32 v[14:15], v[14:15], {v2(F+2*k)}")
    a("v_add_f32 v14, v14, v15")
    reduce8(a, 14, 15)
    a(f"v_mul_f32 v14, {f2h(1.0/576):#x}, v14")
    a("v_mov_b32 v16, 0\nv_mov_b32 v17, 0")
    for k in range(36):
        a(f"v_pk_add_f32 v[18:19], {v2(F+2*k)}, v[14:15] op_sel_hi:[1,0] neg_lo:[0,1] neg_hi:[0,1]")
        a(f"v_pk_fma_f32 v[16:17], v[18:19], v[18:19], v[16:17]")
    a("v_add_f32 v16, v16, v17")
    reduce8(a, 16, 17)
    a(f"v_mul_f32 v16, {f2h(1.0/576):#x}, v16")
    round_bf16(a, 16, 16, 17)
    a(f"v_add_f32 v16, {f2h(1e-5):#x}, v16")
    round_bf16(a, 16, 16, 17)
    a("v_sqrt_f32 v16, v16\ns_nop 0")
    round_bf16(a, 16, 16, 17)
    a("v_rcp_f32 v16, v16")
    round_bf16(a, 14, 14, 17)
    for k in range(36):
        a(f"v_pk_add_f32 v[18:19], {v2(F+2*k)}, v[14:15] op_sel_hi:[1,0] neg_lo:[0,1] neg_hi:[0,1]")
        a(f"v_cvt_pk_bf16_f32 v20, v18, v19")
        a(f"v_lshlrev_b32 v18, 16, v20")
        a(f"v_and_b32 v19, 0xffff0000, v20")
        a(f"v_pk_mul_f32 v[18:19], v[18:19], v[16:17] op_sel_hi:[1,0]")
        a(f"v_cvt_pk_bf16_f32 v{X+k}, v18, v19")
    a(f"s_add_u32 s{S_A+1}, s{S_A}, {WS_XN}")
    for i in range(9):
        a(f"buffer_store_dwordx4 {v4(X+4*i)}, v7, {WSR}, s{S_A+1} offen sc1")
        a(f"s_add_u32 s{S_A+1}, s{S_A+1}, 4096")
    a("s_waitcnt vmcnt(0)")
    a("s_barrier")
    sk = a.label("Lln")
    a(f"s_cmp_lg_u32 s{S_W}, 0\ns_cbranch_scc1 {sk}")
    flag_addr(a, S_A+3, FG_XN, S_SEG, 64)
    signal(a, S_A+3, stage=0)
    a(f"""{sk}:
    s_add_u32 s{S_SEG}, s{S_SEG}, {stride}
    s_branch {lp}
    {done}:
    s_waitcnt vmcnt(0)
    """)

NT = {"t1": "nt", "ffn": "nt", "alpha": "nt"}
def load_wT_frags(a, srd, row_stride, col_byte_sgpr, nrows, dst0, swz_rows=True, kmap="nat", lds0=0, ncolgran=16, nt="nt"):
    nfr = nrows // 16
    ninstr = nrows // 4
    per_wave = ninstr // 4
    lp = a.label("Lwd")
    a(f"""
    v_and_b32 v1, 63, v0
    v_lshrrev_b32 v2, 4, v1            ; row in group (0..3)
    v_and_b32 v3, 15, v1               ; pos
    v_lshlrev_b32 v4, 2, v2
    v_xor_b32 v3, v3, v4               ; source granule = pos ^ (row<<2)
    v_lshlrev_b32 v3, 4, v3
    v_mul_u32_u24 v4, {row_stride}, v2
    v_add_u32 v3, v3, v4               ; per-lane source offset
    s_mul_i32 s{S_A+4}, s{S_W}, {per_wave}        ; first instr index
    s_lshl_b32 s{S_A+5}, s{S_A+4}, 10
    s_add_u32 s{S_A+5}, s{S_A+5}, {lds0}          ; LDS dst
    s_mul_i32 s{S_A+6}, s{S_A+4}, {4*row_stride}
    s_add_u32 s{S_A+6}, s{S_A+6}, s{col_byte_sgpr}
    s_mov_b32 s{S_A+7}, 0
    {lp}:
    s_mov_b32 m0, s{S_A+5}
    s_add_u32 s{S_A+5}, s{S_A+5}, 1024
    buffer_load_dwordx4 v3, {srd}, s{S_A+6} offen {nt} lds
    s_add_u32 s{S_A+6}, s{S_A+6}, {4*row_stride}
    s_add_u32 s{S_A+7}, s{S_A+7}, 1
    s_cmp_lt_u32 s{S_A+7}, {per_wave}
    s_cbranch_scc1 {lp}
    ; tr-read address: lane (gi=l>>4, r'=(l>>2)&3, c'=l&3): kg=gi>>1 ; col granule q = 4w + 2(gi&1) + (c'>>1)
    v_lshrrev_b32 v4, 4, v1            ; gi
    v_lshrrev_b32 v5, 2, v1
    v_and_b32 v5, 3, v5                ; r'
    v_and_b32 v6, 3, v1                ; c'
    v_lshrrev_b32 v7, 1, v4            ; kg
    v_and_b32 v8, 1, v4                ; gi&1
    v_lshlrev_b32 v8, 1, v8
    v_lshrrev_b32 v9, 1, v6
    s_lshl_b32 s{S_A+4}, s{S_W}, 2
    v_add3_u32 v8, v8, v9, s{S_A+4}    ; q
    v_lshlrev_b32 v9, 2, v5            ; f(d) = (d&3)<<2 = r'<<2  (row offsets below keep d&3 = r')
    v_xor_b32 v8, v8, v9
    v_lshlrev_b32 v8, 4, v8
    v_and_b32 v9, 1, v6
    v_lshlrev_b32 v9, 3, v9
    v_add_u32 v8, v8, v9               ; col part
    v_lshlrev_b32 v9, {3 if kmap=='nat' else 2}, v7     ; kg*8 (nat) or kg*4 (pc)
    v_add_u32 v9, v9, v5               ; + r'
    v_lshlrev_b32 v9, 8, v9
    v_add3_u32 v10, v8, v9, {0}
    v_add_u32 v10, {lds0}, v10
    s_waitcnt vmcnt(0)
    s_barrier
    """.replace("v_add3_u32 v10, v8, v9, 0", "v_add_u32 v10, v8, v9"))
    second = 4*256 if kmap == 'nat' else 8*256
    for t in range(nfr):
        off = (t % 8)*4096
        if t and t % 8 == 0: a("v_add_u32 v10, 32768, v10")
        a(f"ds_read_b64_tr_b16 {v2(dst0+4*t)}, v10 offset:{off}")
        a(f"ds_read_b64_tr_b16 {v2(dst0+4*t+2)}, v10 offset:{off+second}")
        if t % 4 == 3: a("s_waitcnt lgkmcnt(4)")
    a("s_waitcnt lgkmcnt(0)")
    a("s_barrier")

def dma_seg(a, s_goff, lds_base_sgpr):
    a(f"""s_mul_i32 s{S_A+8}, s{S_W}, 9216
    s_add_u32 s{S_A+9}, s{S_A+8}, s{lds_base_sgpr}
    s_add_u32 s{S_A+8}, s{S_A+8}, s{s_goff}""")
    for i in range(9):
        a(f"s_mov_b32 m0, s{S_A+9}")
        a(f"s_add_u32 s{S_A+9}, s{S_A+9}, 1024")
        a(f"buffer_load_dwordx4 v1, {WSR}, s{S_A+8} offen sc1 lds")
        a(f"s_add_u32 s{S_A+8}, s{S_A+8}, 1024")

def role_t1(a, L_fail):
    WF = 64; ACC = 16; RING = 32
    vform = a.label("Lt1v");
    a(f"""
    s_lshr_b32 s{S_B}, s{S_IDX}, 5            ; mat
    s_and_b32 s{S_B+1}, s{S_IDX}, 31          ; h
    s_lshl_b32 s{S_B+2}, s{S_B}, 3
    s_add_u32 s{S_B+2}, s{S_B+2}, {KA_WQ}
    s_load_dwordx2 s[{S_A}:{S_A+1}], s[0:1], s{S_B+2}
    s_waitcnt lgkmcnt(0)
    s_mov_b32 s{S_TMP}, s{S_A}
    s_mov_b32 s{S_TMP+1}, s{S_A+1}
    s_mov_b32 s{S_TMP+2}, {576*8192}
    s_mov_b32 s{S_TMP+3}, 0x20000
    s_lshl_b32 s{S_B+3}, s{S_B+1}, 8          ; h*256 bytes
    """)
    load_wT_frags(a, TMPR, 8192, S_B+3, 576, WF, kmap='nat', nt=NT['t1'])
    a(f"""
    s_lshl_b32 s{S_B+4}, s{S_B}, 24
    s_add_u32 s{S_B+4}, s{S_B+4}, {WS_QF}
    s_lshl_b32 s{S_B+5}, s{S_B+1}, 13
    s_add_u32 s{S_B+4}, s{S_B+4}, s{S_B+5}
    s_lshl_b32 s{S_B+5}, s{S_W}, 11
    s_add_u32 s{S_B+4}, s{S_B+4}, s{S_B+5}
    s_lshl_b32 s{S_B+6}, s{S_B+1}, 4
    s_lshl_b32 s{S_B+5}, s{S_B}, 2
    s_add_u32 s{S_B+6}, s{S_B+6}, s{S_B+5}
    s_add_u32 s{S_B+6}, s{S_B+6}, {FG_QKV}
    v_and_b32 v1, 63, v0
    v_lshlrev_b32 v1, 4, v1
    """)
    wait_init(a, L_fail)
    a(f"s_mov_b32 s{S_SEG}, 0\ns_mov_b32 s{S_B+7}, {FG_XN}")
    sk0 = a.label("Lt1")
    a(f"s_cmp_lg_u32 s{S_W}, 0\ns_cbranch_scc1 {sk0}")
    wait_flags(a, S_B+7, 0, 1, L_fail)
    a(f"s_add_u32 s{S_B+7}, s{S_B+7}, 64")
    wait_flags(a, S_B+7, 0, 1, L_fail)
    a(f"{sk0}:\ns_barrier")
    a(f"s_mov_b32 s{S_B+8}, {WS_XN}\ns_mov_b32 s{S_B+9}, 0")
    dma_seg(a, S_B+8, S_B+9)
    a("s_waitcnt vmcnt(0)")
    lp = a.label("Lt1"); nonext = a.label("Lt1"); st = a.label("Lt1"); nosig = a.label("Lt1")
    a(f"""{lp}:
    s_waitcnt vmcnt(2)
    s_barrier
    s_cmp_lg_u32 s{S_W}, 0
    s_cbranch_scc1 {nosig}
    s_cmp_lt_u32 s{S_SEG}, 2
    s_cbranch_scc1 {nosig}
    s_sub_u32 s{S_A+1}, s{S_SEG}, 2
    s_lshl_b32 s{S_A+1}, s{S_A+1}, 9
    s_add_u32 s{S_A+1}, s{S_A+1}, s{S_B+6}""")
    a(f"s_sub_u32 s{S_SEG}, s{S_SEG}, 2")
    signal(a, S_A+1, stage=2)
    a(f"s_add_u32 s{S_SEG}, s{S_SEG}, 2")
    a(f"""{nosig}:
    s_cmp_ge_u32 s{S_SEG}, 63
    s_cbranch_scc1 {nonext}
    s_add_u32 s{S_B+8}, s{S_B+8}, {SEGB}
    s_xor_b32 s{S_B+10}, s{S_B+9}, {SEGB}""")
    dma_seg(a, S_B+8, S_B+10)
    a(f"""{nonext}:
    s_add_u32 s{S_B+11}, s{S_SEG}, 2
    s_min_u32 s{S_B+11}, s{S_B+11}, 63
    s_lshl_b32 s{S_B+11}, s{S_B+11}, 6
    s_add_u32 s{S_B+11}, s{S_B+11}, {FG_XN}
    s_mov_b64 exec, 1
    buffer_load_dword v3, off, {WSR}, s{S_B+11} sc1
    s_mov_b64 exec, -1
    v_add_u32 v2, s{S_B+9}, v1""")
    for k in range(8): a(f"ds_read_b128 {v4(RING+4*k)}, v2 offset:{k*1024}")
    a(f"s_cmp_eq_u32 s{S_B}, 2\ns_cbranch_scc1 {vform}")
    def body(vmode):
        for t in range(36):
            sl = RING + 4*(t % 8)
            out = 7 if t == 0 else min(6, 35 - t)
            a(f"s_waitcnt lgkmcnt({out})")
            c = "0" if t == 0 else f"v[{ACC}:{ACC+15}]"
            if vmode: a(f"v_mfma_f32_32x32x16_bf16 v[{ACC}:{ACC+15}], {v4(sl)}, {v4(WF+4*t)}, {c}")
            else:     a(f"v_mfma_f32_32x32x16_bf16 v[{ACC}:{ACC+15}], {v4(WF+4*t)}, {v4(sl)}, {c}")
            if t >= 1 and t + 7 < 36:
                a(f"ds_read_b128 {v4(RING+4*((t+7) % 8))}, v2 offset:{(t+7)*1024}")
    body(False)
    a("s_nop 7\ns_nop 3")
    for u in range(2):
        for k in range(4):
            a(f"v_cvt_pk_bf16_f32 v{RING+4*u+k}, v{ACC+8*u+2*k}, v{ACC+8*u+2*k+1}")
    a(f"s_branch {st}")
    a(f"{vform}:")
    body(True)
    a("s_nop 7\ns_nop 3")
    for v in range(2):
        a(f"v_cvt_pk_bf16_f32 v{RING+4*v}, v{ACC+4*v}, v{ACC+4*v+1}")
        a(f"v_cvt_pk_bf16_f32 v{RING+4*v+1}, v{ACC+4*v+2}, v{ACC+4*v+3}")
        a(f"v_cvt_pk_bf16_f32 v{RING+4*v+2}, v{ACC+4*v+8}, v{ACC+4*v+9}")
        a(f"v_cvt_pk_bf16_f32 v{RING+4*v+3}, v{ACC+4*v+10}, v{ACC+4*v+11}")
    a(f"""{st}:
    s_mul_i32 s{S_A}, s{S_SEG}, {32*8192}
    s_add_u32 s{S_A}, s{S_A}, s{S_B+4}
    buffer_store_dwordx4 {v4(RING)}, v1, {WSR}, s{S_A} offen sc1
    buffer_store_dwordx4 {v4(RING+4)}, v1, {WSR}, s{S_A} offen offset:1024 sc1
    """)
    okp = a.label("Lt1")
    a(f"""s_cmp_lg_u32 s{S_W}, 0
    s_cbranch_scc1 {okp}
    s_waitcnt vmcnt(2)
    v_readfirstlane_b32 s{S_A+1}, v3
    s_cmp_lg_u32 s{S_A+1}, 0
    s_cbranch_scc1 {okp}""")
    wait_flags(a, S_B+11, 0, 1, L_fail)
    a(f"""{okp}:
    s_xor_b32 s{S_B+9}, s{S_B+9}, {SEGB}
    s_add_u32 s{S_SEG}, s{S_SEG}, 1
    s_cmp_lt_u32 s{S_SEG}, 64
    s_cbranch_scc1 {lp}
    s_waitcnt vmcnt(0)
    s_barrier
    """)
    fin = a.label("Lt1")
    a(f"s_cmp_lg_u32 s{S_W}, 0\ns_cbranch_scc1 {fin}")
    for sg in (62, 63):
        a(f"s_add_u32 s{S_A+1}, s{S_B+6}, {sg*512}\ns_mov_b32 s{S_SEG}, {sg}")
        signal(a, S_A+1, stage=2)
    a(f"{fin}:\ns_waitcnt vmcnt(0)")

def load_tiles_inplace(a, srd, row_stride, s_base, ntile_outer, ntile_inner, outer_step, inner_steps, lds0):
    lp = a.label("Lti"); done = a.label("Lti"); lp2 = a.label("Lti"); d2 = a.label("Lti")
    a(f"""
    v_and_b32 v1, 63, v0
    v_lshrrev_b32 v2, 2, v1            ; row (0..15)
    v_and_b32 v3, 3, v1                ; granule (0..3)
    v_mul_u32_u24 v2, {row_stride}, v2
    v_lshlrev_b32 v3, 4, v3
    v_add_u32 v3, v2, v3
    s_mov_b32 s{S_A+4}, s{S_W}
    {lp}:
    s_cmp_ge_u32 s{S_A+4}, {ntile_outer}
    s_cbranch_scc1 {done}
    s_mul_i32 s{S_A+5}, s{S_A+4}, {ntile_inner*1024}
    s_add_u32 s{S_A+5}, s{S_A+5}, {lds0}
    s_mul_i32 s{S_A+6}, s{S_A+4}, {outer_step}
    s_add_u32 s{S_A+6}, s{S_A+6}, s{s_base}
    """)
    for i in range(ntile_inner):
        a(f"s_mov_b32 m0, s{S_A+5}")
        a(f"s_add_u32 s{S_A+5}, s{S_A+5}, 1024")
        a(f"s_add_u32 s{S_A+7}, s{S_A+6}, {inner_steps[i]}")
        a(f"buffer_load_dwordx4 v3, {srd}, s{S_A+7} offen nt lds")
    a(f"""s_add_u32 s{S_A+4}, s{S_A+4}, 4
    s_branch {lp}
    {done}:
    v_lshrrev_b32 v4, 4, v1
    v_lshrrev_b32 v5, 2, v1
    v_and_b32 v5, 3, v5
    v_and_b32 v6, 3, v1
    v_lshrrev_b32 v7, 1, v4
    v_lshlrev_b32 v7, 2, v7
    v_add_u32 v7, v7, v5               ; row
    v_lshlrev_b32 v7, 6, v7
    v_and_b32 v8, 1, v4
    v_lshlrev_b32 v8, 5, v8
    v_lshlrev_b32 v6, 3, v6            ; c'*8
    v_add3_u32 v7, v7, v8, v6
    v_lshlrev_b32 v8, 4, v1            ; lane*16
    s_waitcnt vmcnt(0)
    s_mov_b32 s{S_A+4}, s{S_W}
    {lp2}:
    s_cmp_ge_u32 s{S_A+4}, {ntile_outer}
    s_cbranch_scc1 {d2}
    s_mul_i32 s{S_A+5}, s{S_A+4}, {ntile_inner*1024}
    s_add_u32 s{S_A+5}, s{S_A+5}, {lds0}
    v_add_u32 v9, s{S_A+5}, v7
    v_add_u32 v10, s{S_A+5}, v8
    """)
    for i in range(ntile_inner):
        r = 16 + 4*(i % 8)
        a(f"ds_read_b64_tr_b16 {v2(r)}, v9 offset:{i*1024}")
        a(f"ds_read_b64_tr_b16 {v2(r+2)}, v9 offset:{i*1024+512}")
        if i % 8 == 7 or i == ntile_inner-1:
            a("s_waitcnt lgkmcnt(0)")
            for k in range(i - (i % 8), i+1):
                a(f"ds_write_b128 v10, {v4(16+4*(k % 8))} offset:{k*1024}")
            a("s_waitcnt lgkmcnt(0)")
    a(f"""s_add_u32 s{S_A+4}, s{S_A+4}, 4
    s_branch {lp2}
    {d2}:
    s_barrier
    """)

def role_alpha(a, L_fail):
    h = S_IDX
    make_srd(a, S_TMP, KA_WO, 4096*1152)
    a(f"s_mul_i32 s{S_B}, s{h}, {128*1152}")
    load_tiles_inplace(a, TMPR, 1152, S_B, 18, 8, 64, [(16*k)*1152 for k in range(8)], 0)
    QF = 16
    KR = 48
    SX = 80
    SM = 96
    KM = 112
    P0 = 144; P1 = 148; PM = 152
    OB = 156
    OA = 188
    VMF = 204
    ACC = [220, 236]
    RING = 0
    a(f"""
    v_and_b32 v1, 63, v0
    v_lshlrev_b32 v2, 4, v1                 ; lane*16
    v_and_b32 v3, 31, v1
    v_lshrrev_b32 v4, 5, v1                 ; hi
    v_and_b32 v5, 7, v3
    v_lshlrev_b32 v6, 4, v4
    v_add3_u32 v5, v5, v6, 8
    v_lshlrev_b32 v5, 4, v5
    v_and_b32 v6, 15, v3
    v_lshlrev_b32 v7, 5, v4
    v_add_u32 v6, v6, v7
    v_lshlrev_b32 v6, 4, v6
    v_lshrrev_b32 v7, 4, v3
    v_lshlrev_b32 v7, 3, v7
    v_add_u32 v6, v6, v7
    v_lshrrev_b32 v7, 2, v3
    v_mul_u32_u24 v7, 4608, v7
    v_lshlrev_b32 v8, 6, v4
    v_and_b32 v9, 3, v3
    v_lshlrev_b32 v9, 4, v9
    v_add3_u32 v7, v7, v8, v9               ; v7
    v_lshlrev_b32 v8, 2, v4
    v_sub_u32 v8, v3, v8
    s_mov_b32 s{S_B+1}, {f2h(0.08838834764831845*1.4426950408889634):#x}
    s_mov_b32 s{S_B+2}, 0xff800000          ; -inf
    """)
    wait_init(a, L_fail)
    lp = a.label("Lal"); done = a.label("Lal")
    a(f"""s_mov_b32 s{S_SEG}, s{S_W}
    {lp}:
    s_cmp_ge_u32 s{S_SEG}, {NA1[0]}
    s_cbranch_scc1 {done}
    s_lshl_b32 s{S_B+3}, s{S_SEG}, 5
    s_add_u32 s{S_B+3}, s{S_B+3}, s{h}       ; seg*32+h
    s_lshl_b32 s{S_B+4}, s{S_B+3}, 13        ; *8192
    s_lshl_b32 s{S_B+5}, s{S_B+3}, 12        ; *4096
    """)
    a(f"s_lshl_b32 s{S_B+14}, s{S_B+3}, 4")
    a(f"s_add_u32 s{S_B+6}, s{S_B+14}, {FG_QKV}"); wait_flags(a, S_B+6, 0, 3, L_fail, vt=14, sleep=ASLEEP[0])
    a(f"s_add_u32 s{S_B+7}, s{S_B+4}, {WS_QF}\ns_add_u32 s{S_B+8}, s{S_B+7}, 4096")
    a(f"s_add_u32 s{S_B+9}, s{S_B+4}, {WS_KF}\ns_add_u32 s{S_B+10}, s{S_B+9}, 4096")
    for k in range(8):
        a(f"buffer_load_dwordx4 {v4(QF+4*k)}, v2, {WSR}, s{S_B+7+(k//4)} offen offset:{(k%4)*1024} sc1")
    for k in range(8):
        a(f"buffer_load_dwordx4 {v4(KR+4*k)}, v2, {WSR}, s{S_B+9+(k//4)} offen offset:{(k%4)*1024} sc1")
    for k in range(8):
        a(f"s_waitcnt vmcnt({7-k})" if False else "")
    a("s_waitcnt vmcnt(0)")
    for k in range(8):
        a(f"v_mfma_f32_32x32x16_bf16 v[{SX}:{SX+15}], {v4(KR+4*k)}, {v4(QF+4*k)}, " + ("0" if k == 0 else f"v[{SX}:{SX+15}]"))
    a(f"s_add_u32 s{S_B+9}, s{S_B+4}, {WS_VF}\ns_add_u32 s{S_B+10}, s{S_B+9}, 4096")
    a("s_nop 7")
    for k in range(8):
        a(f"buffer_load_dwordx4 {v4(KR+4*k)}, v2, {WSR}, s{S_B+9+(k//4)} offen offset:{(k%4)*1024} sc1")
    a(f"s_add_u32 s{S_B+6}, s{S_B+14}, {FG_M}"); wait_flags(a, S_B+6, 0, 1, L_fail, vt=14, sleep=ASLEEP[0])
    a(f"s_add_u32 s{S_B+11}, s{S_B+5}, {WS_KM}\ns_add_u32 s{S_B+12}, s{S_B+5}, {WS_VM}")
    for k in range(8):
        a(f"buffer_load_dwordx4 {v4(KM+4*k)}, v5, {WSR}, s{S_B+11} offen offset:{(k>>1)*1024+(k&1)*512} sc1")
    for w2 in range(4):
        a(f"buffer_load_dword v{VMF+4*w2}, v6, {WSR}, s{S_B+12} offen offset:{w2*1024} sc1")
        a(f"buffer_load_dword v{VMF+4*w2+1}, v6, {WSR}, s{S_B+12} offen offset:{w2*1024+256} sc1")
        a(f"v_mov_b32 v{VMF+4*w2+2}, 0\nv_mov_b32 v{VMF+4*w2+3}, 0")
    a("s_waitcnt vmcnt(8)")
    for k in range(8):
        a(f"v_mfma_f32_32x32x16_bf16 v[{SM}:{SM+15}], {v4(KM+4*k)}, {v4(QF+4*k)}, " + ("0" if k == 0 else f"v[{SM}:{SM+15}]"))
    for r in range(16):
        kk = 8*(r >> 2) + (r & 3)
        a(f"v_cmp_le_i32 vcc, {kk}, v8")
        a("s_nop 1" if r == 0 else "s_nop 0")
        a(f"v_mov_b32 v10, s{S_B+2}")
        a(f"v_cndmask_b32 v{SX+r}, v10, v{SX+r}, vcc")
    a("s_nop 7\ns_nop 3")
    a(f"v_max3_f32 v10, v{SX}, v{SX+1}, v{SX+2}")
    for r in range(3, 15, 2):
        a(f"v_max3_f32 v10, v10, v{SX+r}, v{SX+r+1}")
    a(f"v_max3_f32 v10, v10, v{SX+15}, v{SM}")
    a(f"v_max3_f32 v10, v10, v{SM+1}, v{SM+2}")
    a(f"v_max_f32 v10, v10, v{SM+3}")
    a("v_mov_b32 v11, v10\ns_nop 1\nv_permlane32_swap_b32 v10, v11\nv_max_f32 v10, v10, v11")
    a(f"v_mul_f32 v10, s{S_B+1}, v10")
    for r in list(range(SX, SX+16)) + list(range(SM, SM+4)):
        a(f"v_fma_f32 v{r}, v{r}, s{S_B+1}, -v10")
        a(f"v_exp_f32 v{r}, v{r}")
    a("s_nop 0")
    a(f"v_add_f32 v11, v{SX}, v{SX+1}")
    for r in list(range(SX+2, SX+16)) + list(range(SM, SM+4)):
        a(f"v_add_f32 v11, v11, v{r}")
    a("v_mov_b32 v12, v11\ns_nop 1\nv_permlane32_swap_b32 v11, v12\nv_add_f32 v11, v11, v12")
    a("v_rcp_f32 v11, v11\ns_nop 0")
    for r in list(range(SX, SX+16)) + list(range(SM, SM+4)):
        a(f"v_mul_f32 v{r}, v{r}, v11")
    for v, P in ((0, P0), (1, P1)):
        a(f"v_cvt_pk_bf16_f32 v{P}, v{SX+4*v}, v{SX+4*v+1}")
        a(f"v_cvt_pk_bf16_f32 v{P+1}, v{SX+4*v+2}, v{SX+4*v+3}")
        a(f"v_cvt_pk_bf16_f32 v{P+2}, v{SX+4*v+8}, v{SX+4*v+9}")
        a(f"v_cvt_pk_bf16_f32 v{P+3}, v{SX+4*v+10}, v{SX+4*v+11}")
    a(f"v_cvt_pk_bf16_f32 v{PM}, v{SM}, v{SM+1}")
    a(f"v_cvt_pk_bf16_f32 v{PM+1}, v{SM+2}, v{SM+3}")
    a(f"v_mov_b32 v{PM+2}, 0\nv_mov_b32 v{PM+3}, 0")
    a("s_waitcnt vmcnt(0)")
    a("s_nop 1")
    for w2 in range(4):
        a(f"v_mfma_f32_32x32x16_bf16 v[{OA}:{OA+15}], {v4(KR+8*w2)}, {v4(P0)}, 0")
        a(f"v_mfma_f32_32x32x16_bf16 v[{OA}:{OA+15}], {v4(KR+8*w2+4)}, {v4(P1)}, v[{OA}:{OA+15}]")
        a(f"v_mfma_f32_32x32x16_bf16 v[{OA}:{OA+15}], {v4(VMF+4*w2)}, {v4(PM)}, v[{OA}:{OA+15}]")
        a("s_nop 7\ns_nop 3")
        for u in range(2):
            for k in range(4):
                a(f"v_cvt_pk_bf16_f32 v{OB+8*w2+4*u+k}, v{OA+8*u+2*k}, v{OA+8*u+2*k+1}")
        a("s_nop 3")
    a(f"s_mul_i32 s{S_B+13}, s{S_B+3}, {SEGB}\ns_add_u32 s{S_B+13}, s{S_B+13}, {WS_PA}")
    a("v_mov_b32 v13, v2")
    n = 144
    for i in range(7):
        a(f"ds_read_b128 a[{4*(i%8)}:{4*(i%8)+3}], v13 offset:{i*1024}")
    base = 0
    for i in range(n):
        ct, ks = i // 8, i % 8
        acc = ACC[ct % 2]
        a(f"s_waitcnt lgkmcnt({min(6, n-1-i)})")
        a(f"v_mfma_f32_32x32x16_bf16 v[{acc}:{acc+15}], a[{4*(i%8)}:{4*(i%8)+3}], {v4(OB+4*ks)}, " + ("0" if ks == 0 else f"v[{acc}:{acc+15}]"))
        j = i + 7
        if j < n:
            off = j*1024 - base
            if off > 65535 - 1024:
                a(f"v_add_u32 v13, 57344, v13"); base += 57344; off = j*1024 - base
            a(f"ds_read_b128 a[{4*(j%8)}:{4*(j%8)+3}], v13 offset:{off}")
        if ks == 3 and ct >= 1 or i == n-1:
            pcs = [ct-1] if i != n-1 else [ct]
            if i == n-1: a("s_nop 7\ns_nop 3")
            for c2 in pcs:
                ac = ACC[c2 % 2]
                for u in range(2):
                    for k in range(4):
                        a(f"v_cvt_pk_bf16_f32 v{QF+4*u+k}, v{ac+8*u+2*k}, v{ac+8*u+2*k+1}")
                for u in range(2):
                    a(f"buffer_store_dwordx4 {v4(QF+4*u)}, v7, {WSR}, s{S_B+13} offen offset:{u*128} sc1")
                a(f"s_add_u32 s{S_B+13}, s{S_B+13}, 256")
                a("s_nop 1")
    a("s_waitcnt vmcnt(0)")
    flag_addr(a, S_B+6, FG_PA, S_SEG, 128, h, 4)
    signal(a, S_B+6, vt=14, stage=4)
    a(f"""s_add_u32 s{S_SEG}, s{S_SEG}, 4
    s_branch {lp}
    {done}:
    s_waitcnt vmcnt(0)
    """)

def role_reduce(a, L_fail, final, npar=2):
    NP = 36 if final else 32
    PSRC = WS_PB if final else WS_PA
    EXTRA = WS_H if final else WS_XP
    ngrp = NP // 4
    if final: make_srd(a, S_IO, KA_OUT, 2048*1152)
    SEL = 16
    D = 24
    LD = 48
    a(f"""
    s_and_b32 s{S_B}, s{S_IDX}, 7             ; tg
    s_lshr_b32 s{S_B+1}, s{S_IDX}, 3          ; parity
    v_and_b32 v1, 63, v0
    v_and_b32 v2, 15, v1                      ; n / m
    v_lshrrev_b32 v3, 4, v1                   ; g
    v_mul_u32_u24 v4, {SEGB}, v3
    v_lshlrev_b32 v5, 4, v2
    s_mul_i32 s{S_B+2}, s{S_B}, 4608
    v_add3_u32 v4, v4, v5, s{S_B+2}           ; v4
    v_add_u32 v6, s{S_B+2}, v5
    v_lshrrev_b32 v7, 1, v2
    v_and_b32 v8, 1, v2
    v_mov_b32 v9, 0x3f80
    v_mov_b32 v10, 0x3f800000
    v_cmp_eq_u32 vcc, 1, v8
    s_nop 1
    v_cndmask_b32 v9, v9, v10, vcc
    """)
    for j in range(4):
        a(f"v_cmp_eq_u32 vcc, {j}, v7\ns_nop 1\nv_cndmask_b32 v{SEL+j}, 0, v9, vcc")
    a(f"""
    v_and_b32 v7, 3, v2                       ; tt
    v_bfe_u32 v8, v2, 2, 1                    ; hi
    v_lshrrev_b32 v9, 3, v2                   ; u
    ; H block offset: tg*4608 + (16bg + n)*16 + g''*8
    v_lshlrev_b32 v10, 3, v3
    v_add_u32 v11, v6, v10                    ; v11 = H store offset (bg adds 256)
    ; HN offset: p*1024 + hi*512 + token*16 + g''*8 ; token = 4tg+tt ; (bg adds 2048)
    v_lshlrev_b32 v12, 10, v9
    v_lshlrev_b32 v13, 9, v8
    v_add3_u32 v12, v12, v13, v10
    v_lshlrev_b32 v13, 4, v7
    s_lshl_b32 s{S_B+3}, s{S_B}, 6
    v_add3_u32 v12, v12, v13, s{S_B+3}        ; v12
    ; out offset: token*1152 + (32bg + 16u + 8g'' + 4hi)*2 ; (bg adds 64)
    v_lshlrev_b32 v13, 2, 0
    s_lshl_b32 s{S_B+3}, s{S_B}, 2
    v_add_u32 v13, s{S_B+3}, v7               ; token in segment
    v_mul_u32_u24 v13, 1152, v13
    v_lshlrev_b32 v14, 5, v9
    v_lshlrev_b32 v15, 4, v3
    v_add3_u32 v13, v13, v14, v15
    v_lshlrev_b32 v14, 3, v8
    v_add_u32 v13, v13, v14                   ; v13
    """.replace("v_lshlrev_b32 v13, 2, 0\n", ""))
    wait_init(a, L_fail)
    lp = a.label("Lrd"); done = a.label("Lrd")
    a(f"""s_mov_b32 s{S_SEG}, s{S_B+1}
    {lp}:
    s_cmp_ge_u32 s{S_SEG}, 64
    s_cbranch_scc1 {done}""")
    skw = a.label("Lrd")
    a(f"s_cmp_lg_u32 s{S_W}, 0\ns_cbranch_scc1 {skw}")
    if final:
        flag_addr(a, S_B+4, FG_H, S_SEG, 128); wait_flags(a, S_B+4, 0, 8, L_fail)
        flag_addr(a, S_B+4, FG_PB, S_SEG, 256); wait_flags(a, S_B+4, 0, 36, L_fail, sleep=1)
    else:
        flag_addr(a, S_B+4, FG_XN, S_SEG, 64); wait_flags(a, S_B+4, 0, 1, L_fail)
        flag_addr(a, S_B+4, FG_PA, S_SEG, 128); wait_flags(a, S_B+4, 0, 32, L_fail, sleep=1)
    a(f"{skw}:\ns_barrier")
    a(f"""s_mul_i32 s{S_B+5}, s{S_SEG}, {NP*SEGB}
    s_add_u32 s{S_B+5}, s{S_B+5}, {PSRC}
    s_mul_i32 s{S_B+6}, s{S_SEG}, {SEGB}
    s_add_u32 s{S_B+7}, s{S_B+6}, {EXTRA}
    s_lshl_b32 s{S_B+8}, s{S_W}, 8
    s_add_u32 s{S_B+5}, s{S_B+5}, s{S_B+8}
    s_add_u32 s{S_B+7}, s{S_B+7}, s{S_B+8}
    """)
    def issue(i, buf):
        r = buf
        for k in range(4): a(f"v_mov_b32 v{r+k}, 0")
        a("s_mov_b64 exec, 0xffff")
        a(f"s_add_u32 s{S_B+9}, s{S_B+7}, {i*1024}")
        a(f"buffer_load_dwordx4 {v4(r)}, v6, {WSR}, s{S_B+9} offen sc1")
        a("s_mov_b64 exec, -1")
        a(f"s_add_u32 s{S_B+9}, s{S_B+5}, {i*1024}")
        for q in range(ngrp):
            a(f"buffer_load_dwordx4 {v4(r+4+4*q)}, v4, {WSR}, s{S_B+9} offen sc1")
            if q < ngrp-1: a(f"s_add_u32 s{S_B+9}, s{S_B+9}, {4*SEGB}")
    def consume(i, buf, pending_after):
        nl = ngrp + 1
        for q in range(nl):
            a(f"s_waitcnt vmcnt({min(63, nl-1-q + pending_after)})")
            a(f"v_mfma_f32_16x16x32_bf16 {v4(D+4*i)}, {v4(SEL)}, {v4(buf+4*q)}, " + ("0" if q == 0 else v4(D+4*i)))
    bufs = [LD, LD+44]
    nl = ngrp + 1
    skip5 = a.label("Lrd")
    issue(0, bufs[0]); issue(1, bufs[1])
    consume(0, bufs[0], nl); issue(2, bufs[0])
    consume(1, bufs[1], nl); issue(3, bufs[1])
    consume(2, bufs[0], nl)
    l5 = a.label("Lrd")
    a(f"s_cmp_lt_u32 s{S_W}, 2\ns_cbranch_scc0 {skip5}")
    issue(4, bufs[0]); consume(3, bufs[1], nl); consume(4, bufs[0], 0)
    a(f"s_branch {l5}\n{skip5}:")
    consume(3, bufs[1], 0)
    for k in range(4): a(f"v_mov_b32 v{D+16+k}, 0")
    a(f"{l5}:")
    a("s_nop 7")
    for i in range(5):
        a(f"v_cvt_pk_bf16_f32 v{LD+2*i}, v{D+4*i}, v{D+4*i+1}")
        a(f"v_cvt_pk_bf16_f32 v{LD+2*i+1}, v{D+4*i+2}, v{D+4*i+3}")
    if final:
        a(f"s_mul_i32 s{S_B+10}, s{S_SEG}, {32*1152}")
        a(f"s_lshl_b32 s{S_B+11}, s{S_W}, 6\ns_add_u32 s{S_B+10}, s{S_B+10}, s{S_B+11}")
        a("s_mov_b32 exec_hi, 0")
        for i in range(4):
            a(f"buffer_store_dwordx2 {v2(LD+2*i)}, v13, {IOR}, s{S_B+10} offen offset:{i*256} {OUTF[0]}")
        sk = a.label("Lrd")
        a(f"s_cmp_lt_u32 s{S_W}, 2\ns_cbranch_scc0 {sk}")
        a(f"buffer_store_dwordx2 {v2(LD+8)}, v13, {IOR}, s{S_B+10} offen offset:{4*256} {OUTF[0]}")
        a(f"{sk}:\ns_mov_b64 exec, -1")
        if REPORT[0]:
            a("s_waitcnt vmcnt(0)"); stamp_max(a, 3, 250)
    else:
        a(f"s_add_u32 s{S_B+10}, s{S_B+6}, {WS_H}\ns_add_u32 s{S_B+10}, s{S_B+10}, s{S_B+8}")
        a("s_mov_b32 exec_hi, 0")
        for i in range(4):
            a(f"buffer_store_dwordx2 {v2(LD+2*i)}, v11, {WSR}, s{S_B+10} offen offset:{i*1024} sc1")
        sk = a.label("Lrd")
        a(f"s_cmp_lt_u32 s{S_W}, 2\ns_cbranch_scc0 {sk}")
        a(f"s_add_u32 s{S_B+11}, s{S_B+10}, 4096")
        a(f"buffer_store_dwordx2 {v2(LD+8)}, v11, {WSR}, s{S_B+11} offen sc1")
        a(f"{sk}:\ns_mov_b64 exec, -1")
        for i in range(5):
            for k in range(2):
                a(f"v_lshlrev_b32 v{D+4*i+2*k}, 16, v{LD+2*i+k}")
                a(f"v_and_b32 v{D+4*i+2*k+1}, 0xffff0000, v{LD+2*i+k}")
        def allsum(r):
            a("s_nop 1")
            a(f"v_add_f32_dpp v{r}, v{r}, v{r} row_ror:4 row_mask:0xf bank_mask:0xf")
            a("s_nop 1")
            a(f"v_add_f32_dpp v{r}, v{r}, v{r} row_ror:8 row_mask:0xf bank_mask:0xf")
            a(f"v_mov_b32 v{r+1}, v{r}\ns_nop 1\nv_permlane16_swap_b32 v{r}, v{r+1}\nv_add_f32 v{r}, v{r}, v{r+1}")
        a(f"v_and_b32 v20, 3, v1\nv_lshlrev_b32 v20, 2, v20\ns_lshl_b32 s{S_B+11}, s{S_W}, 4\nv_add_u32 v21, s{S_B+11}, v20")
        a(f"v_add_f32 v22, v{D}, v{D+1}")
        for k in range(2, 20): a(f"v_add_f32 v22, v22, v{D+k}")
        allsum(22)
        a("s_mov_b64 exec, 0xf\nds_write_b32 v21, v22\ns_mov_b64 exec, -1\ns_waitcnt lgkmcnt(0)\ns_barrier")
        for w2 in range(4): a(f"ds_read_b32 v{44+w2}, v20 offset:{w2*16}")
        a("s_waitcnt lgkmcnt(0)\nv_add_f32 v44, v44, v45\nv_add_f32 v46, v46, v47\nv_add_f32 v44, v44, v46")
        a(f"v_mul_f32 v44, {f2h(1.0/576):#x}, v44")
        a("v_mov_b32 v22, 0")
        for k in range(16):
            a(f"v_sub_f32 v23, v{D+k}, v44\nv_fmac_f32 v22, v23, v23")
        sk2 = a.label("Lrd")
        a(f"s_cmp_lt_u32 s{S_W}, 2\ns_cbranch_scc0 {sk2}")
        for k in range(16, 20):
            a(f"v_sub_f32 v23, v{D+k}, v44\nv_fmac_f32 v22, v23, v23")
        a(f"{sk2}:")
        allsum(22)
        a("s_mov_b64 exec, 0xf\nds_write_b32 v21, v22 offset:64\ns_mov_b64 exec, -1\ns_waitcnt lgkmcnt(0)\ns_barrier")
        for w2 in range(4): a(f"ds_read_b32 v{45+w2}, v20 offset:{64+w2*16}")
        a("s_waitcnt lgkmcnt(0)\nv_add_f32 v45, v45, v46\nv_add_f32 v47, v47, v48\nv_add_f32 v45, v45, v47")
        a(f"v_mul_f32 v45, {f2h(1.0/576):#x}, v45")
        round_bf16(a, 45, 45, 46)
        a(f"v_add_f32 v45, {f2h(1e-5):#x}, v45")
        round_bf16(a, 45, 45, 46)
        a("v_sqrt_f32 v45, v45\ns_nop 0")
        round_bf16(a, 45, 45, 46)
        a("v_rcp_f32 v45, v45")
        round_bf16(a, 44, 44, 46)
        for i in range(5):
            for k in range(2):
                r = D+4*i+2*k
                a(f"v_sub_f32 v46, v{r}, v44\nv_sub_f32 v47, v{r+1}, v44")
                a("v_cvt_pk_bf16_f32 v46, v46, v47")
                a("v_and_b32 v47, 0xffff0000, v46\nv_lshlrev_b32 v46, 16, v46")
                a("v_mul_f32 v46, v46, v45\nv_mul_f32 v47, v47, v45")
                a(f"v_cvt_pk_bf16_f32 v{LD+16+2*i+k}, v46, v47")
        a(f"s_add_u32 s{S_B+10}, s{S_B+6}, {WS_HN}\ns_lshl_b32 s{S_B+11}, s{S_W}, 11\ns_add_u32 s{S_B+10}, s{S_B+10}, s{S_B+11}")
        a("s_mov_b32 exec_hi, 0")
        for i in range(4):
            a(f"buffer_store_dwordx2 {v2(LD+16+2*i)}, v12, {WSR}, s{S_B+10} offen sc1")
            a(f"s_add_u32 s{S_B+10}, s{S_B+10}, 8192")
        sk = a.label("Lrd")
        a(f"s_cmp_lt_u32 s{S_W}, 2\ns_cbranch_scc0 {sk}")
        a(f"buffer_store_dwordx2 {v2(LD+16+8)}, v12, {WSR}, s{S_B+10} offen sc1")
        a(f"{sk}:\ns_mov_b64 exec, -1")
        a("s_waitcnt vmcnt(0)\ns_barrier")
        sk = a.label("Lrd")
        a(f"s_cmp_lg_u32 s{S_W}, 0\ns_cbranch_scc1 {sk}")
        flag_addr(a, S_B+4, FG_H, S_SEG, 128, S_B, 4)
        signal(a, S_B+4, stage=5)
        a(f"{sk}:")
    a(f"""s_add_u32 s{S_SEG}, s{S_SEG}, {npar}
    s_branch {lp}
    {done}:
    s_waitcnt vmcnt(0)
    """)

def role_ffn(a, L_fail, first=0, s0=64):
    W1 = 64
    ACC1 = 16
    RING = 32
    HID = 208
    make_srd(a, S_TMP, KA_W1, 576*9216)
    a(f"s_lshl_b32 s{S_B}, s{S_IDX}, 8")
    load_wT_frags(a, TMPR, 9216, S_B, 576, W1, kmap='pc')
    make_srd(a, S_TMP, KA_W2, 4608*1152)
    a(f"s_mul_i32 s{S_B}, s{S_IDX}, {128*1152}")
    load_tiles_inplace(a, TMPR, 1152, S_B, 18, 8, 64, [(16*k)*1152 for k in range(8)], 0)
    a(f"""v_and_b32 v1, 63, v0
    v_lshlrev_b32 v1, 4, v1
    s_lshl_b32 s{S_B+1}, s{S_W}, 13
    v_add_u32 v2, s{S_B+1}, v1""")
    sk = a.label("Lff")
    for i in range(5):
        if i == 4: a(f"s_cmp_lt_u32 s{S_W}, 2\ns_cbranch_scc0 {sk}")
        for ks in range(8):
            a(f"ds_read_b128 a[{(i*8+ks)*4}:{(i*8+ks)*4+3}], v2 offset:{ks*1024}")
        a("s_waitcnt lgkmcnt(0)")
        a("v_add_u32 v2, 32768, v2")
    a(f"{sk}:\ns_barrier")
    XCH = 73728
    a(f"""
    v_and_b32 v3, 63, v0
    v_and_b32 v4, 31, v3                    ; token n
    v_lshrrev_b32 v5, 5, v3                 ; hi
    v_lshrrev_b32 v7, 2, v4
    v_mul_u32_u24 v7, 4608, v7
    v_lshlrev_b32 v8, 6, v5
    v_and_b32 v9, 3, v4
    v_lshlrev_b32 v9, 4, v9
    v_add3_u32 v7, v7, v8, v9
    v_add_u32 v8, {XCH}, v1
    s_lshl_b32 s{S_B+1}, s{S_W}, 11
    v_add_u32 v9, s{S_B+1}, v8
    """)
    DEC = XCH + 8192
    S_PEND = S_B+11
    wait_init(a, L_fail)
    S_STR = S_B+15
    a(f"s_mov_b32 s{S_SEG}, {first}\ns_mov_b32 s{S_B+7}, {FG_H + first*128}\ns_mov_b32 s{S_PEND}, 0")
    wg_wait_flags(a, S_B+7, 0, 8, L_fail, sleep=1)
    a(f"s_mov_b32 s{S_B+8}, {WS_HN + first*SEGB}\ns_mov_b32 s{S_B+9}, 0")
    dma_seg(a, S_B+8, S_B+9)
    a("s_waitcnt vmcnt(0)")
    lp = a.label("Lff")
    a(f"""{lp}:
    s_cmp_ge_u32 s{S_SEG}, {min(s0, 64) if not first else 0}
    s_cselect_b32 s{S_STR}, 2, 1
    s_waitcnt vmcnt(8)
    s_barrier
    v_add_u32 v2, s{S_B+9}, v1""")
    for k in range(8): a(f"ds_read_b128 {v4(RING+4*k)}, v2 offset:{k*1024}")
    for t in range(36):
        sl = RING + 4*(t % 8)
        a(f"s_waitcnt lgkmcnt({7 if t == 0 else min(6, 35 - t)})")
        a(f"v_mfma_f32_32x32x16_bf16 v[{ACC1}:{ACC1+15}], {v4(W1+4*t)}, {v4(sl)}, " + ("0" if t == 0 else f"v[{ACC1}:{ACC1+15}]"))
        if t >= 1 and t + 7 < 36:
            a(f"ds_read_b128 {v4(RING+4*((t+7) % 8))}, v2 offset:{(t+7)*1024}")
        if t == 12:
            a(f"""s_lshl_b32 s{S_B+12}, s{S_STR}, 7
            s_add_u32 s{S_B+12}, s{S_B+12}, s{S_B+7}
            s_mov_b64 exec, 0xff
            v_lshrrev_b32 v13, 2, v1
            buffer_load_dword v11, v13, {WSR}, s{S_B+12} offen sc1
            s_mov_b64 exec, -1""")
    a("s_nop 7\ns_nop 3")
    for r_ in range(16): a(f"v_max_f32 v{ACC1+r_}, 0, v{ACC1+r_}")
    for u in range(2):
        for k in range(4):
            a(f"v_cvt_pk_bf16_f32 v{RING+4*u+k}, v{ACC1+8*u+2*k}, v{ACC1+8*u+2*k+1}")
    a(f"ds_write_b128 v9, {v4(RING)}\nds_write_b128 v9, {v4(RING+4)} offset:1024")
    a("s_waitcnt vmcnt(0)")
    nd = a.label("Lff")
    a(f"""s_cmp_lg_u32 s{S_W}, 0
    s_cbranch_scc1 {nd}
    s_mov_b64 exec, 0xff
    v_cmp_eq_u32 vcc, 0, v11
    s_mov_b64 exec, -1
    s_cmp_eq_u64 vcc, 0
    s_cselect_b32 s{S_A+1}, 1, 0
    s_add_u32 s{S_A+2}, s{S_SEG}, s{S_STR}
    s_cmp_lt_u32 s{S_A+2}, 64
    s_cselect_b32 s{S_A+1}, s{S_A+1}, 0
    v_mov_b32 v10, s{S_A+1}
    v_mov_b32 v12, {DEC}
    ds_write_b32 v12, v10
    {nd}:
    s_waitcnt lgkmcnt(0)
    s_barrier""")
    for k in range(8): a(f"ds_read_b128 {v4(HID+4*k)}, v8 offset:{k*1024}")
    a(f"v_mov_b32 v12, {DEC}\nds_read_b32 v10, v12")
    ns = a.label("Lff"); npf = a.label("Lff")
    a(f"""s_cmp_lg_u32 s{S_W}, 0
    s_cbranch_scc1 {ns}
    s_cmp_eq_u32 s{S_PEND}, 0
    s_cbranch_scc1 {ns}
    s_mov_b32 s{S_A+12}, s{S_SEG}
    s_sub_u32 s{S_SEG}, s{S_PEND}, 1""")
    flag_addr(a, S_A+1, FG_PB, S_SEG, 256, S_IDX, 4)
    signal(a, S_A+1, stage=6)
    a(f"""s_mov_b32 s{S_SEG}, s{S_A+12}
    {ns}:
    s_mov_b32 s{S_PEND}, 0
    s_waitcnt lgkmcnt(0)
    v_readfirstlane_b32 s{S_B+10}, v10
    s_cmp_eq_u32 s{S_B+10}, 0
    s_cbranch_scc1 {npf}
    s_mul_i32 s{S_B+12}, s{S_STR}, {SEGB}
    s_add_u32 s{S_B+8}, s{S_B+8}, s{S_B+12}
    s_xor_b32 s{S_B+12}, s{S_B+9}, {SEGB}""")
    dma_seg(a, S_B+8, S_B+12)
    a(f"{npf}:")
    a(f"""s_mul_i32 s{S_B+13}, s{S_SEG}, 36
    s_add_u32 s{S_B+13}, s{S_B+13}, s{S_IDX}
    s_mul_i32 s{S_B+13}, s{S_B+13}, {SEGB}
    s_add_u32 s{S_B+13}, s{S_B+13}, {WS_PB}
    s_lshl_b32 s{S_B+14}, s{S_W}, 8
    s_add_u32 s{S_B+13}, s{S_B+13}, s{S_B+14}""")
    AC2 = [ACC1, 240]
    def ffn2(i):
        ac = AC2[i % 2]
        for ks in range(8):
            a(f"v_mfma_f32_32x32x16_bf16 v[{ac}:{ac+15}], a[{(i*8+ks)*4}:{(i*8+ks)*4+3}], {v4(HID+4*ks)}, " + ("0" if ks == 0 else f"v[{ac}:{ac+15}]"))
    def epi(i):
        ac = AC2[i % 2]
        for u in range(2):
            for k in range(4):
                a(f"v_cvt_pk_bf16_f32 v{RING+8+8*(i%2)+4*u+k}, v{ac+8*u+2*k}, v{ac+8*u+2*k+1}")
        for u in range(2):
            a(f"buffer_store_dwordx4 {v4(RING+8+8*(i%2)+4*u)}, v7, {WSR}, s{S_B+13} offen offset:{u*128} sc1")
        a(f"s_add_u32 s{S_B+13}, s{S_B+13}, 1024")
    ffn2(0); ffn2(1); epi(0); ffn2(2); epi(1); ffn2(3); epi(2)
    sk4 = a.label("Lff"); e4 = a.label("Lff")
    a(f"s_cmp_lt_u32 s{S_W}, 2\ns_cbranch_scc0 {sk4}")
    ffn2(4); epi(3); a("s_nop 7\ns_nop 3"); epi(4)
    a(f"s_branch {e4}\n{sk4}:\ns_nop 7\ns_nop 3")
    epi(3)
    a(f"{e4}:")
    slow = a.label("Lff"); fin = a.label("Lff"); sk = a.label("Lff")
    a(f"""s_cmp_eq_u32 s{S_B+10}, 0
    s_cbranch_scc1 {slow}
    s_add_u32 s{S_PEND}, s{S_SEG}, 1
    s_add_u32 s{S_SEG}, s{S_SEG}, s{S_STR}
    s_lshl_b32 s{S_B+12}, s{S_STR}, 7
    s_add_u32 s{S_B+7}, s{S_B+7}, s{S_B+12}
    s_xor_b32 s{S_B+9}, s{S_B+9}, {SEGB}
    s_branch {lp}
    {slow}:
    s_waitcnt vmcnt(0)
    s_barrier
    s_cmp_lg_u32 s{S_W}, 0
    s_cbranch_scc1 {sk}""")
    flag_addr(a, S_A+1, FG_PB, S_SEG, 256, S_IDX, 4)
    signal(a, S_A+1, stage=6)
    a(f"""{sk}:
    s_add_u32 s{S_SEG}, s{S_SEG}, s{S_STR}
    s_cmp_lt_u32 s{S_SEG}, 64
    s_cbranch_scc0 {fin}
    s_lshl_b32 s{S_B+12}, s{S_STR}, 7
    s_add_u32 s{S_B+7}, s{S_B+7}, s{S_B+12}""")
    wg_wait_flags(a, S_B+7, 0, 8, L_fail, sleep=1)
    a(f"s_mul_i32 s{S_B+12}, s{S_STR}, {SEGB}\ns_add_u32 s{S_B+8}, s{S_B+8}, s{S_B+12}\ns_xor_b32 s{S_B+9}, s{S_B+9}, {SEGB}")
    dma_seg(a, S_B+8, S_B+9)
    a(f"""s_waitcnt vmcnt(0)
    s_branch {lp}
    {fin}:
    s_waitcnt vmcnt(0)
    """)

def role_alpha2(a, L_fail, one_seg_sgpr=None):
    h = S_IDX
    make_srd(a, S_TMP, KA_WO, 4096*1152)
    a(f"s_mul_i32 s{S_B}, s{h}, {128*1152}")
    load_tiles_inplace(a, TMPR, 1152, S_B, 18, 8, 64, [(16*k)*1152 for k in range(8)], 0)
    XA = 147456
    QF = 16
    KR = 48
    VR = 64
    SX = 80; SM = 96
    P0 = 112; P1 = 116; PM = 120
    VMF = 124
    OA = 128
    OB = 144
    ST = 176
    ACC = [192, 208]
    a(f"""
    v_and_b32 v1, 63, v0
    v_lshlrev_b32 v2, 4, v1                 ; lane*16
    v_and_b32 v3, 31, v1                    ; n
    v_lshrrev_b32 v4, 5, v1                 ; hi
    v_add_u32 v16, {XA}, v2
    v_mov_b32 v12, v16
    v_and_b32 v5, 7, v3
    v_lshlrev_b32 v6, 4, v4
    v_add3_u32 v5, v5, v6, 8
    v_lshlrev_b32 v5, 4, v5
    v_add_u32 v5, {XA}, v5
    v_and_b32 v6, 15, v3
    v_lshlrev_b32 v7, 5, v4
    v_add_u32 v6, v6, v7
    v_lshlrev_b32 v6, 4, v6
    v_lshrrev_b32 v7, 4, v3
    v_lshlrev_b32 v7, 3, v7
    v_add_u32 v6, v6, v7
    s_lshl_b32 s{S_B+15}, s{S_W}, 10
    v_add_u32 v6, s{S_B+15}, v6
    v_lshrrev_b32 v7, 2, v3
    v_mul_u32_u24 v7, 4608, v7
    v_lshlrev_b32 v8, 6, v4
    v_and_b32 v9, 3, v3
    v_lshlrev_b32 v9, 4, v9
    v_add3_u32 v7, v7, v8, v9
    v_lshlrev_b32 v8, 2, v4
    v_sub_u32 v8, v3, v8                    ; n - 4hi
    s_lshl_b32 s{S_B+15}, s{S_W}, 11
    v_add_u32 v9, s{S_B+15}, v12
    s_lshl_b32 s{S_B+15}, s{S_W}, 13
    v_add_u32 v13, s{S_B+15}, v2
    s_mov_b32 s{S_B+1}, {f2h(0.08838834764831845*1.4426950408889634):#x}
    s_mov_b32 s{S_B+2}, 0xff800000
    """)
    wait_init(a, L_fail)
    lp = a.label("Lal"); done = a.label("Lal")
    a(f"""s_mov_b32 s{S_SEG}, {('s%d' % one_seg_sgpr) if one_seg_sgpr else 0}
    {lp}:
    s_lshl_b32 s{S_B+3}, s{S_SEG}, 5
    s_add_u32 s{S_B+3}, s{S_B+3}, s{h}
    s_lshl_b32 s{S_B+4}, s{S_B+3}, 13
    s_lshl_b32 s{S_B+5}, s{S_B+3}, 12
    s_lshl_b32 s{S_B+14}, s{S_B+3}, 4
    s_add_u32 s{S_B+6}, s{S_B+14}, {FG_QKV}
    """)
    wg_wait_flags(a, S_B+6, 0, 3, L_fail)
    a(f"""s_lshl_b32 s{S_B+7}, s{S_W}, 11
    s_add_u32 s{S_B+8}, s{S_B+4}, s{S_B+7}          ; (seg,h) + w*2048
    s_add_u32 s{S_B+9}, s{S_B+7}, {XA}""")
    for mat, base, ldo in ((0, WS_QF, 0), (1, WS_KF, 8192)):
        for u in range(2):
            a(f"s_add_u32 s{S_B+10}, s{S_B+9}, {ldo + u*1024}\ns_mov_b32 m0, s{S_B+10}")
            a(f"s_add_u32 s{S_B+11}, s{S_B+8}, {base + u*1024}")
            a(f"buffer_load_dwordx4 v2, {WSR}, s{S_B+11} offen sc1 lds")
    a(f"s_add_u32 s{S_B+11}, s{S_B+8}, {WS_VF}")
    a(f"buffer_load_dwordx4 {v4(VR)}, v2, {WSR}, s{S_B+11} offen sc1")
    a(f"buffer_load_dwordx4 {v4(VR+4)}, v2, {WSR}, s{S_B+11} offen offset:1024 sc1")
    a("s_waitcnt vmcnt(2)\ns_barrier")
    for k in range(8): a(f"ds_read_b128 {v4(QF+4*k)}, v12 offset:{k*1024}")
    for k in range(3): a(f"ds_read_b128 {v4(KR+4*(k%4))}, v12 offset:{8192+k*1024}")
    for k in range(8):
        a(f"s_waitcnt lgkmcnt({min(2, 7-k)})")
        a(f"v_mfma_f32_32x32x16_bf16 v[{SX}:{SX+15}], {v4(KR+4*(k%4))}, {v4(QF+4*k)}, " + ("0" if k == 0 else f"v[{SX}:{SX+15}]"))
        if k + 3 < 8: a(f"ds_read_b128 {v4(KR+4*((k+3)%4))}, v12 offset:{8192+(k+3)*1024}")
    a(f"s_add_u32 s{S_B+6}, s{S_B+14}, {FG_M}")
    wg_wait_flags(a, S_B+6, 0, 1, L_fail, sleep=1)
    a(f"""s_lshl_b32 s{S_B+7}, s{S_W}, 10
    s_add_u32 s{S_B+10}, s{S_B+7}, {XA}
    s_mov_b32 m0, s{S_B+10}
    s_add_u32 s{S_B+11}, s{S_B+5}, s{S_B+7}
    s_add_u32 s{S_B+11}, s{S_B+11}, {WS_KM}
    buffer_load_dwordx4 v2, {WSR}, s{S_B+11} offen sc1 lds
    s_add_u32 s{S_B+12}, s{S_B+5}, {WS_VM}
    buffer_load_dword v{VMF}, v6, {WSR}, s{S_B+12} offen sc1
    buffer_load_dword v{VMF+1}, v6, {WSR}, s{S_B+12} offen offset:256 sc1
    v_mov_b32 v{VMF+2}, 0
    v_mov_b32 v{VMF+3}, 0
    """)
    for r in range(16):
        kk = 8*(r >> 2) + (r & 3)
        a(f"v_cmp_le_i32 vcc, {kk}, v8")
        a(f"v_mov_b32 v10, s{S_B+2}")
        a("s_nop 0")
        a(f"v_cndmask_b32 v{SX+r}, v10, v{SX+r}, vcc")
    a("s_waitcnt vmcnt(2)\ns_barrier")
    for k in range(3): a(f"ds_read_b128 {v4(KR+4*(k%4))}, v5 offset:{(k>>1)*1024+(k&1)*512}")
    for k in range(8):
        a(f"s_waitcnt lgkmcnt({min(2, 7-k)})")
        a(f"v_mfma_f32_32x32x16_bf16 v[{SM}:{SM+15}], {v4(KR+4*(k%4))}, {v4(QF+4*k)}, " + ("0" if k == 0 else f"v[{SM}:{SM+15}]"))
        if k + 3 < 8:
            j = k + 3
            a(f"ds_read_b128 {v4(KR+4*(j%4))}, v5 offset:{(j>>1)*1024+(j&1)*512}")
    a(f"v_max3_f32 v10, v{SX}, v{SX+1}, v{SX+2}")
    for r in range(3, 15, 2): a(f"v_max3_f32 v10, v10, v{SX+r}, v{SX+r+1}")
    a(f"v_max_f32 v10, v10, v{SX+15}")
    a("s_nop 3")
    a(f"v_max3_f32 v10, v10, v{SM}, v{SM+1}")
    a(f"v_max3_f32 v10, v10, v{SM+2}, v{SM+3}")
    a("v_mov_b32 v11, v10\ns_nop 1\nv_permlane32_swap_b32 v10, v11\nv_max_f32 v10, v10, v11")
    a(f"v_mul_f32 v10, s{S_B+1}, v10")
    regs = list(range(SX, SX+16)) + list(range(SM, SM+4))
    for r in regs: a(f"v_fma_f32 v{r}, v{r}, s{S_B+1}, -v10")
    for r in regs: a(f"v_exp_f32 v{r}, v{r}")
    a(f"s_nop 0\nv_add_f32 v11, v{SX}, v{SX+1}")
    a(f"v_add_f32 v14, v{SX+2}, v{SX+3}")
    for i, r in enumerate(regs[4:]): a(f"v_add_f32 v{11 if i % 2 == 0 else 14}, v{11 if i % 2 == 0 else 14}, v{r}")
    a("v_add_f32 v11, v11, v14")
    a("v_mov_b32 v14, v11\ns_nop 1\nv_permlane32_swap_b32 v11, v14\nv_add_f32 v11, v11, v14")
    a("v_rcp_f32 v14, v11\ns_nop 0")
    for r in range(0, 20, 2):
        rr = regs[r]
        a(f"v_pk_mul_f32 {v2(rr)}, {v2(rr)}, v[14:15] op_sel_hi:[1,0]")
    for v, P in ((0, P0), (1, P1)):
        a(f"v_cvt_pk_bf16_f32 v{P}, v{SX+4*v}, v{SX+4*v+1}")
        a(f"v_cvt_pk_bf16_f32 v{P+1}, v{SX+4*v+2}, v{SX+4*v+3}")
        a(f"v_cvt_pk_bf16_f32 v{P+2}, v{SX+4*v+8}, v{SX+4*v+9}")
        a(f"v_cvt_pk_bf16_f32 v{P+3}, v{SX+4*v+10}, v{SX+4*v+11}")
    a(f"v_cvt_pk_bf16_f32 v{PM}, v{SM}, v{SM+1}")
    a(f"v_cvt_pk_bf16_f32 v{PM+1}, v{SM+2}, v{SM+3}")
    a(f"v_mov_b32 v{PM+2}, 0\nv_mov_b32 v{PM+3}, 0")
    a("s_waitcnt vmcnt(0)\ns_nop 1")
    a(f"v_mfma_f32_32x32x16_bf16 v[{OA}:{OA+15}], {v4(VR)}, {v4(P0)}, 0")
    a(f"v_mfma_f32_32x32x16_bf16 v[{OA}:{OA+15}], {v4(VR+4)}, {v4(P1)}, v[{OA}:{OA+15}]")
    a(f"v_mfma_f32_32x32x16_bf16 v[{OA}:{OA+15}], {v4(VMF)}, {v4(PM)}, v[{OA}:{OA+15}]")
    for i in range(7): a(f"ds_read_b128 a[{4*i}:{4*i+3}], v13 offset:{i*1024}")
    a("s_nop 5")
    for u in range(2):
        for k in range(4):
            a(f"v_cvt_pk_bf16_f32 v{ST+4*u+k}, v{OA+8*u+2*k}, v{OA+8*u+2*k+1}")
    a(f"ds_write_b128 v9, {v4(ST)} offset:8192\nds_write_b128 v9, {v4(ST+4)} offset:{8192+1024}")
    a("s_waitcnt lgkmcnt(0)\ns_barrier")
    for k in range(8): a(f"ds_read_b128 {v4(OB+4*k)}, v12 offset:{8192+k*1024}")
    a(f"""s_mul_i32 s{S_B+13}, s{S_B+3}, {SEGB}
    s_add_u32 s{S_B+13}, s{S_B+13}, {WS_PA}
    s_lshl_b32 s{S_B+15}, s{S_W}, 8
    s_add_u32 s{S_B+13}, s{S_B+13}, s{S_B+15}
    s_waitcnt lgkmcnt(0)""")
    def gemm(ntiles):
        n = ntiles*8
        def off(j): return (j // 8)*32768 + (j % 8)*1024
        base = 0
        a("v_mov_b32 v15, v13")
        for i in range(n):
            t, ks = i // 8, i % 8
            acc = ACC[t % 2]
            if i > 0 or True: a(f"s_waitcnt lgkmcnt({min(6, n-1-i)})")
            a(f"v_mfma_f32_32x32x16_bf16 v[{acc}:{acc+15}], a[{4*(i%8)}:{4*(i%8)+3}], {v4(OB+4*ks)}, " + ("0" if ks == 0 else f"v[{acc}:{acc+15}]"))
            j = i + 7
            if j < n:
                o = off(j) - base
                if o > 65535 - 1024:
                    a("v_add_u32 v15, 65536, v15"); base += 65536; o = off(j) - base
                a(f"ds_read_b128 a[{4*(j%8)}:{4*(j%8)+3}], v15 offset:{o}")
            if (ks == 3 and t >= 1) or i == n-1:
                c2 = t-1 if i != n-1 else t
                if i == n-1: a("s_nop 7\ns_nop 3")
                ac = ACC[c2 % 2]
                for u in range(2):
                    for k in range(4):
                        a(f"v_cvt_pk_bf16_f32 v{ST+4*u+k}, v{ac+8*u+2*k}, v{ac+8*u+2*k+1}")
                for u in range(2):
                    a(f"buffer_store_dwordx4 {v4(ST+4*u)}, v7, {WSR}, s{S_B+13} offen offset:{u*128} sc1")
                a(f"s_add_u32 s{S_B+13}, s{S_B+13}, 1024")
                a("s_nop 1")
    g4 = a.label("Lal"); ge = a.label("Lal")
    a(f"s_cmp_lt_u32 s{S_W}, 2\ns_cbranch_scc0 {g4}")
    gemm(5)
    a(f"s_branch {ge}\n{g4}:")
    gemm(4)
    a(f"{ge}:\ns_waitcnt vmcnt(0)\ns_barrier")
    sk = a.label("Lal")
    a(f"s_cmp_lg_u32 s{S_W}, 0\ns_cbranch_scc1 {sk}")
    flag_addr(a, S_B+6, FG_PA, S_SEG, 128, h, 4)
    signal(a, S_B+6, stage=4)
    a(f"{sk}:")
    if not one_seg_sgpr:
        a(f"""s_add_u32 s{S_SEG}, s{S_SEG}, 1
        s_cmp_lt_u32 s{S_SEG}, 64
        s_cbranch_scc1 {lp}""")
    a("s_waitcnt vmcnt(0)")
```
